```python
import torch

def _softmax(x, axis=-1):
    return torch.softmax(x, dim=axis)

def _gelu(x):
    return torch.nn.functional.gelu(x, approximate='tanh')

def _silu(x):
    return torch.nn.functional.silu(x)

def _sigmoid(x):
    return torch.sigmoid(x)

def _layernorm(x, axis=-1, eps=1e-05):
    m = x.mean(dim=axis, keepdim=True)
    v = x.var(dim=axis, keepdim=True, unbiased=False)
    return (x - m) / torch.sqrt(v + eps)

def _scatter_add(tgt, idx, src, axis=0):
    return tgt.clone().index_add_(axis, idx, src)

def _segment_sum(src, seg, n):
    out = torch.zeros((n,) + src.shape[1:], dtype=src.dtype)
    return out.index_add_(0, seg, src)

def _pad(x, pw):
    flat = tuple((v for pair in reversed(pw) for v in pair))
    return torch.nn.functional.pad(x, flat)
kernel_name = 'concat_heads__memory_aug_recurrent_mem_tr__ssm_conv_s4__prompt'

def setup_inputs():

    _w = lambda a: (lambda t: t.to(torch.bfloat16) if t.is_floating_point() else t)(torch.as_tensor(a))

    def _A_setup():
        B, S, Dm = (1, 2048, 640)
        H, Dh = (32, 128)
        M, seg = (8, 32)
        seg = min(seg, S)
        S = S // seg * seg
        return {'x': _w((lambda *s: torch.randn(*s, dtype=torch.bfloat16) * 0.05)(B, S, Dm)), 'mem0': _w((lambda *s: torch.randn(*s, dtype=torch.bfloat16) * 0.4)(B, M, Dm)), 'Wq': _w((lambda *s: torch.randn(*s, dtype=torch.bfloat16) * 6.4)(Dm, H, Dh) * Dm ** (-0.5)), 'Wk': _w((lambda *s: torch.randn(*s, dtype=torch.bfloat16) * 6.4)(Dm, H, Dh) * Dm ** (-0.5)), 'Wv': _w((lambda *s: torch.randn(*s, dtype=torch.bfloat16) * 0.4)(Dm, H, Dh) * Dm ** (-0.5)), 'Wo': _w((lambda *s: torch.randn(*s, dtype=torch.bfloat16) * 0.4)(H, Dh, Dm) * (H * Dh) ** (-0.5)), 'seg_len': seg}
    _A_in = _A_setup()

    def _B_setup():
        B, L, D, N = (1, 2048, 640, 128)
        A_re = -(lambda _x: torch.exp(torch.as_tensor(_x)))((lambda *s: torch.randn(*s, dtype=torch.bfloat16) * 6.4)(D, N))
        A_im = torch.pi * (lambda *s: torch.randn(*s, dtype=torch.bfloat16) * 0.05)(D, N)
        B_re = (lambda *s: torch.randn(*s, dtype=torch.bfloat16) * 0.1)(D, N)
        B_im = (lambda *s: torch.randn(*s, dtype=torch.bfloat16) * 0.1)(D, N)
        C_re = (lambda *s: torch.randn(*s, dtype=torch.bfloat16) * 0.1)(D, N)
        C_im = (lambda *s: torch.randn(*s, dtype=torch.bfloat16) * 0.1)(D, N)
        log_dt = (lambda *s: torch.randn(*s, dtype=torch.bfloat16) * 0.05)(D) * 0.5 - 4.0
        Dskip = (lambda *s: torch.randn(*s, dtype=torch.bfloat16) * 0.05)(D)
        return {'u': _w((lambda *s: torch.randn(*s, dtype=torch.bfloat16) * 0.05)(B, L, D)), 'A_re': _w(A_re), 'A_im': _w(A_im), 'B_re': _w(B_re), 'B_im': _w(B_im), 'C_re': _w(C_re), 'C_im': _w(C_im), 'log_dt': _w(log_dt), 'Dskip': _w(Dskip)}
    _B_in = _B_setup()
    return {'A_x': _A_in['x'], 'A_mem0': _A_in['mem0'], 'A_Wq': _A_in['Wq'], 'A_Wk': _A_in['Wk'], 'A_Wv': _A_in['Wv'], 'A_Wo': _A_in['Wo'], 'A_seg_len': _A_in['seg_len'], 'B_u': _B_in['u'], 'B_A_re': _B_in['A_re'], 'B_A_im': _B_in['A_im'], 'B_B_re': _B_in['B_re'], 'B_B_im': _B_in['B_im'], 'B_C_re': _B_in['C_re'], 'B_C_im': _B_in['C_im'], 'B_log_dt': _B_in['log_dt'], 'B_Dskip': _B_in['Dskip']}

def reference(A_x, A_mem0, A_Wq, A_Wk, A_Wv, A_Wo, A_seg_len, B_u, B_A_re, B_A_im, B_B_re, B_B_im, B_C_re, B_C_im, B_log_dt, B_Dskip):

    def _A_ref(x, mem0, Wq, Wk, Wv, Wo, seg_len):
        B, S, Dm = x.shape
        H, Dh = (Wq.shape[1], Wq.shape[2])
        M = mem0.shape[1]
        scale = Dh ** (-0.5)
        n_seg = S // seg_len
        L = M + seg_len
        idx = torch.arange(L)
        mask = (idx[:, None] < M) | (idx[:, None] >= idx[None, :])
        mem = mem0
        outs = []
        for s in range(n_seg):
            xs = x[:, s * seg_len:(s + 1) * seg_len, :].clone()
            h = torch.concatenate([mem, xs], axis=1)
            q = torch.einsum('btd,dhe->bhte', h, Wq)
            k = torch.einsum('btd,dhe->bhte', h, Wk)
            v = torch.einsum('btd,dhe->bhte', h, Wv)
            scores = torch.einsum('bhqe,bhke->bhqk', q, k) * scale
            scores = torch.where(mask[None, None], scores, -1000000000.0)
            p = _softmax(scores, axis=-1)
            o = torch.einsum('bhqk,bhke->bhqe', p, v)
            o = torch.einsum('bhte,hed->btd', o, Wo)
            mem = o[:, :M, :].clone()
            outs.append(o[:, M:, :])
        return torch.concatenate(outs, axis=1)

    def _B_ref(u, A_re, A_im, B_re, B_im, C_re, C_im, log_dt, Dskip):
        Bsz, L, D = u.shape
        dt = torch.exp(log_dt)[:, None]
        A = A_re + 1j * A_im
        Bc = B_re + 1j * B_im
        Cc = C_re + 1j * C_im
        logdA = dt * A
        dB = dt * Bc
        l = (lambda x, dt: x.to(dt))(torch.arange(L), A_re.dtype)
        P = torch.exp(logdA[:, :, None] * l[None, None, :])
        K = torch.einsum('dn,dnl,dn->dl', Cc, P, dB).real
        L2 = 2 * L
        Kp = _pad(K, ((0, 0), (0, L)))
        up = (lambda x, *d: x.permute(*d))(u, 0, 2, 1)
        up = _pad(up, ((0, 0), (0, 0), (0, L)))
        Kf = (lambda x, axes=(-2, -1): torch.fft.rfft2(x.float(), dim=axes))(Kp[:, None, :], axes=(-2, -1))
        Uf = (lambda x, axes=(-2, -1): torch.fft.rfft2(x.float(), dim=axes))(up[:, :, None, :], axes=(-2, -1))
        Yf = Uf * Kf[None, :, :, :]
        y = (lambda x, s, axes=(-2, -1): torch.fft.irfft2(x, s=s, dim=axes).to(torch.bfloat16))(Yf, (1, L2), axes=(-2, -1))[:, :, 0, :L]
        y = (lambda x, *d: x.permute(*d))(y, 0, 2, 1) + u * Dskip[None, None, :]
        return y
    a = _A_ref(A_x, A_mem0, A_Wq, A_Wk, A_Wv, A_Wo, A_seg_len)
    b = _B_ref(B_u, B_A_re, B_A_im, B_B_re, B_B_im, B_C_re, B_C_im, B_log_dt, B_Dskip)
    return torch.concatenate([a, b], axis=-1)
```

```python
class Asm:
    def __init__(self):
        self.lines=[]
        self._lab=0
    def __call__(self, s=''):
        for l in s.split('\n'):
            l=l.strip()
            if l: self.lines.append(('' if l.endswith(':') else '    ')+l)
    def c(self, s): self.lines.append('    ; '+s)
    def label(self, base='L'):
        self._lab+=1
        return f'{base}_{self._lab}'
    def text(self): return '\n'.join(self.lines)+'\n'
    def srd(self, d, b, nbytes):
        self(f's_mov_b32 s{d}, s{b}\ns_and_b32 s{d+1}, s{b+1}, 0xffff\ns_mov_b32 s{d+2}, {hex(nbytes)}\ns_mov_b32 s{d+3}, 0x00020000')

def v(a,n=1): return f'v{a}' if n==1 else f'v[{a}:{a+n-1}]'
def a_(a,n=1): return f'a{a}' if n==1 else f'a[{a}:{a+n-1}]'
def s(a,n=1): return f's{a}' if n==1 else f's[{a}:{a+n-1}]'

def kernel_desc(name, vgpr=256, accum=256, sgpr=102, kernarg=152):
    return f'''.amdhsa_kernel {name}
  .amdhsa_next_free_vgpr {vgpr}
  .amdhsa_next_free_sgpr {sgpr}
  .amdhsa_accum_offset {accum}
  .amdhsa_group_segment_fixed_size 0
  .amdhsa_kernarg_size {kernarg}
  .amdhsa_user_sgpr_count 2
  .amdhsa_user_sgpr_kernarg_segment_ptr 1
  .amdhsa_system_sgpr_workgroup_id_x 1
.end_amdhsa_kernel
'''
def wrap(name, body, grid, block, lds, vgpr=256, accum=256, sgpr=102, kernarg=152):
    return f'''; @launch grid=({grid},1,1) block=({block},1,1) lds={lds}
.amdgcn_target "amdgcn-amd-amdhsa--gfx950"
.text
.globl {name}
.p2align 8
.type {name},@function
{name}:
{body}
.section .rodata,"a"
.p2align 6
{kernel_desc(name,vgpr,accum,sgpr,kernarg)}'''
```

```python
from common import *
sID,sWAVE=20,22
TMO=1<<20
def poll(A, lab, fail, load, vreg, sneed, sT, mask=None):
    if mask is not None: A(f's_mov_b64 exec, {mask}')
    A(f's_mov_b32 s{sT}, 0\n{lab}:\n{load}\ns_add_u32 s{sT}, s{sT}, 1\ns_cmp_gt_u32 s{sT}, {TMO}\ns_cbranch_scc1 {fail}\ns_waitcnt vmcnt(0)\nv_cmp_gt_i32 vcc, s{sneed}, v{vreg}\ns_cbranch_vccz {lab}_ok\ns_sleep 2\ns_branch {lab}\n{lab}_ok:')
    if mask is not None: A('s_mov_b64 exec, -1')

def att_code(A, flags=False, sfx='a', idreg=sID, fail='L_end'):
    L=lambda n: f'L_{n}{sfx}'
    sH,sSEG,sT,sT2,sKV,sQ,sM,sO,sO2,sC,sN,sFO=24,25,26,27,28,29,30,31,32,33,34,35
    sMK=36
    vL=255
    Qr,Kr,Vr,Xr,VM,S,PM,P,O=16,48,80,112,128,136,156,180,188
    A(f's_and_b32 s{sH}, s{idreg}, 7\ns_lshl_b32 s{sH}, s{sH}, 2\ns_add_u32 s{sH}, s{sH}, s{sWAVE}\ns_lshr_b32 s{sSEG}, s{idreg}, 3')
    A(f'v_lshlrev_b32 v0, 4, v{vL}\nv_lshlrev_b32 v1, 3, v{vL}\nv_and_b32 v2, 15, v{vL}\nv_lshrrev_b32 v3, 4, v{vL}\nv_lshlrev_b32 v3, 2, v3')
    for r in range(4): A(f'v_add_u32 v4, {r}, v3\nv_cmp_le_u32 s[{sMK+2*r}:{sMK+2*r+1}], v4, v2')
    A(f'v_mov_b32 v5, {hex(0xd028965f)}')
    A(f's_mov_b32 s{sC}, {hex(0x3e0293ee)}')
    for r in range(PM,PM+24): A(f'v_mov_b32 v{r}, 0')
    A(f'v_mov_b32 v{P+2}, 0\nv_mov_b32 v{P+3}, 0')
    A(f's_lshl_b32 s{sFO}, s{sSEG}, 7\ns_lshl_b32 s{sT}, s{sH}, 2\ns_add_u32 s{sFO}, s{sFO}, s{sT}\ns_add_u32 s{sFO}, s{sFO}, {FL_O}')
    if flags:
        A(f's_and_b32 s{sT}, s{sSEG}, 1\ns_mul_i32 s{sT2}, s{sT}, 96\ns_add_u32 s{sT2}, s{sT2}, s{sH}\nv_lshl_add_u32 v6, v{vL}, 5, s{sT2}\nv_lshlrev_b32 v6, 7, v6\nv_add_u32 v6, {FL_QKV}, v6')
        A(f's_lshl_b32 s{sT}, s{sT}, 5\ns_add_u32 s{sT}, s{sT}, s{sH}\ns_lshl_b32 s{sT}, s{sT}, 7\ns_add_u32 s44, s{sT}, {FL_KVM}')
    A(f'{L("loop")}:')
    A(f's_mul_i32 s{sKV}, s{sSEG}, {SEGB}\ns_lshl_b32 s{sT}, s{sH}, 14\ns_add_u32 s{sKV}, s{sKV}, s{sT}')
    A(f's_lshl_b32 s{sT}, s{sSEG}, 5\ns_add_u32 s{sT}, s{sT}, s{sH}\ns_lshl_b32 s{sQ}, s{sT}, 13\ns_add_u32 s{sQ}, s{sQ}, {WS_Q}\ns_mul_i32 s{sM}, s{sT}, 6144\ns_add_u32 s{sM}, s{sM}, {WS_KVM}')
    A(f's_lshl_b32 s{sO}, s{sSEG}, 18\ns_lshl_b32 s{sT}, s{sH}, 12\ns_add_u32 s{sO}, s{sO}, s{sT}\ns_add_u32 s{sO}, s{sO}, {WS_O}\ns_add_u32 s{sO2}, s{sO}, 0x20000')
    if flags:
        A(f's_lshr_b32 s{sN}, s{sSEG}, 1\ns_add_u32 s{sN}, s{sN}, 1')
        poll(A,L('pq'),fail,f'buffer_load_dword v7, v6, {WS}, 0 offen sc1',7,sN,sT,mask=7)
    for kk in range(4):
        for t in range(2): A(f'buffer_load_dwordx4 v[{Qr+8*kk+4*t}:{Qr+8*kk+4*t+3}], v0, {WS}, s{sQ} offen offset:{(kk&1)*2048+1024*t} sc1')
        if kk==1: A(f's_add_u32 s{sQ}, s{sQ}, 4096')
    for kk in range(4):
        for t in range(2): A(f'buffer_load_dwordx4 v[{Kr+8*kk+4*t}:{Kr+8*kk+4*t+3}], v0, {WS}, s{sKV} offen offset:{1024*t} sc1')
        for t in range(2): A(f'buffer_load_dwordx4 v[{Vr+8*kk+4*t}:{Vr+8*kk+4*t+3}], v0, {WS}, s{sKV} offen offset:{2048+1024*t} sc1')
        A(f's_add_u32 s{sKV}, s{sKV}, 4096')
    if flags:
        A(f's_add_u32 s{sN}, s{sSEG}, 1')
        poll(A,L('pm'),fail,f'buffer_load_dword v7, off, {WS}, s44 sc1',7,sN,sT,mask=1)
    for kk in range(4):
        A(f'buffer_load_dwordx4 v[{Xr+4*kk}:{Xr+4*kk+3}], v0, {WS}, s{sM} offen offset:{(kk&1)*1536} sc1')
        A(f'buffer_load_dwordx2 v[{VM+2*kk}:{VM+2*kk+1}], v1, {WS}, s{sM} offen offset:{(kk&1)*1536+1024} sc1')
        if kk==1: A(f's_add_u32 s{sM}, s{sM}, 3072')
    T0_=[S,S+4]; T1_=[S+8,S+12]; T2_=S+16
    def mf(d,a,b,first): A(f'v_mfma_f32_16x16x32_bf16 v[{d}:{d+3}], v[{a}:{a+3}], v[{b}:{b+3}], '+('0' if first else f'v[{d}:{d+3}]'))
    A('s_waitcnt vmcnt(8)')
    for kk in range(4):
        mf(T1_[0],Kr+8*kk,Qr+8*kk,kk==0); mf(T1_[1],Kr+8*kk,Qr+8*kk+4,kk==0); mf(T2_,Kr+8*kk+4,Qr+8*kk+4,kk==0)
    for kk in range(4):
        A(f's_waitcnt vmcnt({7-2*kk})')
        mf(T0_[0],Xr+4*kk,Qr+8*kk,kk==0); mf(T0_[1],Xr+4*kk,Qr+8*kk+4,kk==0)
    for d in (T1_[0],T2_):
        for r in range(4): A(f'v_cndmask_b32 v{d+r}, v5, v{d+r}, s[{sMK+2*r}:{sMK+2*r+1}]')
    vals=[[T0_[0],T0_[0]+1]+list(range(T1_[0],T1_[0]+4)), [T0_[1],T0_[1]+1]+list(range(T1_[1],T1_[1]+4))+list(range(T2_,T2_+4))]
    m=[8,10]
    def xred(op):
        for sw in ('16','32'):
            for q in range(2): A(f'v_mov_b32 v{m[q]+1}, v{m[q]}')
            A('s_nop 0')
            for q in range(2): A(f'v_permlane{sw}_swap_b32 v{m[q]}, v{m[q]+1}')
            for q in range(2): A(f'{op} v{m[q]}, v{m[q]}, v{m[q]+1}')
    for q in range(2):
        x=vals[q]; A(f'v_max_f32 v{m[q]}, v{x[0]}, v{x[1]}')
        for i in range(2,len(x),2): A(f'v_max3_f32 v{m[q]}, v{m[q]}, v{x[i]}, v{x[i+1]}')
    xred('v_max_f32')
    for q in range(2): A(f'v_mul_f32 v{m[q]}, s{sC}, v{m[q]}')
    for q in range(2):
        for x in vals[q]: A(f'v_fma_f32 v{x}, v{x}, s{sC}, -v{m[q]}')
    for q in range(2):
        for x in vals[q]: A(f'v_exp_f32 v{x}, v{x}')
    for q in range(2):
        x=vals[q]; A(f'v_add_f32 v{m[q]}, v{x[0]}, v{x[1]}')
        for y in x[2:]: A(f'v_add_f32 v{m[q]}, v{m[q]}, v{y}')
    xred('v_add_f32')
    for q in range(2): A(f'v_rcp_f32 v{m[q]}, v{m[q]}')
    for q in range(2):
        x=vals[q]
        for i in range(0,len(x),2): A(f'v_pk_mul_f32 v[{x[i]}:{x[i]+1}], v[{x[i]}:{x[i]+1}], v[{m[q]}:{m[q]+1}] op_sel_hi:[1,0]')
    for q in range(2):
        x=vals[q]
        for i in range(2,len(x),2): cvt(A,P+4*q+i//2-1,x[i],x[i+1])
        cvt(A,PM+12*q+2,x[0],x[1]); cvt(A,PM+12*q+9,x[0],x[1])
    A('s_waitcnt vmcnt(0)\ns_nop 0')
    win={0:2,1:8,2:0,3:6}
    for q in range(2):
        for et in range(8): mf(O+32*q+4*et,Vr+4*et,P+4*q,True)
        for et in range(8): mf(O+32*q+4*et,VM+4*(et>>2),PM+12*q+win[et&3],False)
    for q in range(2):
        for mm in range(4):
            d=O+32*q+8*mm; o=Qr+16*q+4*mm
            if q==1 and mm==0: A('s_nop 0')
            for h in range(4): cvt(A,o+h,d+2*h,d+2*h+1)
            A(f'buffer_store_dwordx4 v[{o}:{o+3}], v0, {WS}, s{sO2 if q else sO} offen offset:{1024*mm} sc1')
    A(f's_add_u32 s{sSEG}, s{sSEG}, 8\ns_lshr_b32 s{sT}, s{sSEG}, 3\nv_mov_b32 v7, s{sT}\ns_waitcnt vmcnt(0)')
    if flags: A(f's_mov_b64 exec, 1\nbuffer_store_dword v7, off, {WS}, s{sFO} sc1\ns_mov_b64 exec, -1')
    A(f's_cmp_lt_u32 s{sSEG}, 64\ns_cbranch_scc1 {L("loop")}')

def out_code(A, flags=False, sfx='o', idreg=sID, nset=6, fail='L_end'):
    L=lambda n: f'L_{n}{sfx}'
    sCG,sU,sT,sT2,sM0,sO,sR,sN,sPAR=24,25,26,27,28,29,30,31,32
    vL=255
    A(f's_mul_i32 s{sU}, s{idreg}, 205\ns_lshr_b32 s{sU}, s{sU}, 12\ns_mul_i32 s{sT}, s{sU}, 20\ns_sub_u32 s{sCG}, s{idreg}, s{sT}')
    A('s_load_dwordx2 s[36:37], s[0:1], 40\ns_load_dwordx2 s[38:39], s[0:1], 128\ns_waitcnt lgkmcnt(0)')
    A.srd(S_T0,36,5242880)
    A(f'v_lshrrev_b32 v1, 2, v{vL}\nv_and_b32 v2, 3, v{vL}\nv_mul_u32_u24 v3, 1280, v1\nv_lshl_add_u32 v3, v2, 4, v3')
    A(f's_mul_i32 s{sT}, s{sWAVE}, {1024*1280}\ns_lshl_b32 s{sT2}, s{sCG}, 6\ns_add_u32 s{sT}, s{sT}, s{sT2}')
    A(f's_lshl_b32 s{sT2}, s{sWAVE}, 15\nv_lshlrev_b32 v4, 4, v{vL}\nv_add_u32 v4, s{sT2}, v4')
    for rnd in range(2):
        A(f's_lshl_b32 s{sM0}, s{sWAVE}, 15')
        for i in range(32):
            A(f's_mov_b32 m0, s{sM0}\ns_add_u32 s{sM0}, s{sM0}, 1024\nbuffer_load_dwordx4 v3, {T0}, s{sT} offen lds\ns_add_u32 s{sT}, s{sT}, {16*1280}')
        for k in range(16):
            A(f's_waitcnt vmcnt({30-2*k})')
            for T in range(2):
                for p in range(2):
                    r=((rnd*16+k)*2+T)*4+2*p
                    A(f'ds_read_b64_tr_b16 a[{r}:{r+1}], v4 offset:{k*2048+p*1024+8*T}')
        A('s_waitcnt lgkmcnt(0)')
    A.srd(S_T0,38,5242880)
    A(f'v_lshlrev_b32 v0, 4, v{vL}\nv_and_b32 v1, 15, v{vL}\nv_lshrrev_b32 v2, 4, v{vL}\nv_mul_u32_u24 v1, 2560, v1\nv_lshl_add_u32 v1, v2, 4, v1')
    A(f's_lshl_b32 s{sT}, s{sWAVE}, 11\nv_add_u32 v2, s{sT}, v0\ns_mov_b32 s{sPAR}, 0')
    A(f's_lshl_b32 s{sT}, s{sWAVE}, 5\nv_lshl_add_u32 v5, v{vL}, 2, s{sT}')
    A('s_barrier')
    B=16; ACC=144
    A(f'{L("loop")}:')
    A(f's_lshl_b32 s{sO}, s{sU}, 17\ns_lshl_b32 s{sT}, s{sWAVE}, 15\ns_add_u32 s{sO}, s{sO}, s{sT}\ns_add_u32 s{sO}, s{sO}, {WS_O}')
    if flags:
        A(f's_lshr_b32 s{sN}, s{sU}, 4\ns_add_u32 s{sN}, s{sN}, 1\ns_bfe_u32 s{sT2}, s{sU}, 0x30001\ns_lshl_b32 s{sT2}, s{sT2}, 7\ns_add_u32 s{sT2}, s{sT2}, {FL_O}')
        poll(A,L('p'),fail,f'buffer_load_dword v7, v5, {WS}, s{sT2} offen sc1',7,sN,sT,mask=255)
    for k in range(32):
        A(f'buffer_load_dwordx4 v[{B+4*k}:{B+4*k+3}], v0, {WS}, s{sO} offen offset:{(k&3)*1024} sc1')
        if k&3==3: A(f's_add_u32 s{sO}, s{sO}, 4096')
    for k in range(32):
        A(f's_waitcnt vmcnt({31-k})')
        for T in range(2):
            d=ACC+4*T
            A(f'v_mfma_f32_16x16x32_bf16 v[{d}:{d+3}], a[{(k*2+T)*4}:{(k*2+T)*4+3}], v[{B+4*k}:{B+4*k+3}], '+('0' if k==0 else f'v[{d}:{d+3}]'))
    A(f'v_add_u32 v3, s{sPAR}, v2\nv_add_u32 v4, s{sPAR}, v0\ns_xor_b32 s{sPAR}, s{sPAR}, 8192')
    A(f's_mul_i32 s{sR}, s{sU}, {16*2560}\ns_lshl_b32 s{sT}, s{sCG}, 6\ns_add_u32 s{sR}, s{sR}, s{sT}\ns_add_u32 s{sU}, s{sU}, {nset}')
    A(f's_cmp_eq_u32 s{sWAVE}, 0\ns_cbranch_scc1 {L("red")}')
    A(f'ds_write_b128 v3, v[{ACC}:{ACC+3}]\nds_write_b128 v3, v[{ACC+4}:{ACC+7}] offset:1024\ns_waitcnt lgkmcnt(0)\ns_barrier\ns_branch {L("nx")}')
    A(f'{L("red")}:\ns_barrier')
    for w in range(1,4):
        for T in range(2): A(f'ds_read_b128 v[{B+8*w+4*T}:{B+8*w+4*T+3}], v4 offset:{2048*w+1024*T}')
    A('s_waitcnt lgkmcnt(0)')
    for w in range(1,4):
        for i in range(0,8,2): A(f'v_pk_add_f32 v[{ACC+i}:{ACC+i+1}], v[{ACC+i}:{ACC+i+1}], v[{B+8*w+i}:{B+8*w+i+1}]')
    for i in range(4): cvt(A,ACC+8+i,ACC+2*i,ACC+2*i+1)
    A(f'buffer_store_dwordx4 v[{ACC+8}:{ACC+11}], v1, {T0}, s{sR} offen')
    A(f'{L("nx")}:\ns_cmp_lt_u32 s{sU}, 128\ns_cbranch_scc1 {L("loop")}')
```

```python
from asmlib import *
from layout import *

class Q:
    def __init__(s): s.q=[]
    def push(s,name): s.q.append(name)
    def wait(s,name):
        i=max(k for k,n in enumerate(s.q) if n==name)
        n=len(s.q)-1-i
        s.q=s.q[i+1:]
        return n
    def has(s,name): return name in s.q

S_WS=8
S_T0=12
S_DBG=16
sTEAM,sRANK,sWAVE=20,21,22
sAGL,sAGL4,sAGR,sAGR4,sPUBR,sRING,sRINGB,sKV,sTOUCH,sINB,sSTEP,sTMO=23,24,25,26,27,28,29,30,31,32,33,34
sRINGX,sRED,sC,sT,sT2,sT3,sINBX=35,36,37,38,39,40,41
sM3,sMC=42,44
sPOL=46; sRDY=47; sKVM=48; sFLG=49
S_P=4
CTMO=400000
vL16,vIDX,vRSA,vRSC,vPUB,vTCH,vSW,vT0W,vOW,vWB,vID=0,1,2,3,4,5,6,7,8,9,10
vT0,vT1,vT2,vT3=12,13,14,15
vA=16; vACC=36; vST=60; vKX=84; vVX=92; vSEL=100; vW=104
LDS_S=0; LDS_T0=4096; LDS_O=5120; LDS_W=8192; LDS_WW=38*1024
LDS_UNITS=[('v',0),('v',1),('v',2),('v',3),('v',4),('q',1),('q',5),('q',7),('q',9)]
HALF=('q',6)
def unit_regs():
    m={}; pool=[('a',i*8) for i in range(32)]+[('v',vW+i*8) for i in range(19)]
    it=iter(pool)
    for kind,n in (('q',10),('k',10),('v',10),('o',5)):
        for f in range(n):
            for t in range(2):
                if (kind,f) in LDS_UNITS or ((kind,f)==HALF and t==0): continue
                m[(kind,f,t)]=next(it)
    assert next(it,None) is None
    return m
UR=unit_regs()
def R(x,n,off=0): return f'{x[0]}[{x[1]+off}:{x[1]+off+n-1}]'
AREG={0:vA+16,1:vKX,2:vKX+4,3:vVX,4:vVX+4,5:vA,6:vA+4,7:vA+8,8:vA+12,9:vA+16}

def chain_code(A, fused=False, stamps=0, nsteps=63, depth=4, polfix=None, diag=False, **kw):
    L=lambda n: f'L_{n}'
    ws=f's[{S_WS}:{S_WS+3}]'
    A('v_and_b32 v20, 63, v0\nv_lshrrev_b32 v21, 6, v0\ns_nop 0')
    A(f'v_readfirstlane_b32 s{sWAVE}, v21')
    A(f'v_lshlrev_b32 v{vL16}, 4, v20')
    A('v_and_b32 v22, 15, v20\nv_lshrrev_b32 v23, 4, v20')
    A(f's_mov_b32 s{sM3}, 0x33333333\ns_mov_b32 s{sM3+1}, 0x33333333\ns_mov_b32 s{sMC}, 0xcccccccc\ns_mov_b32 s{sMC+1}, 0xcccccccc')
    A(f'v_mov_b32 v{vIDX}, 0x4444\nv_mov_b32 v24, 0xeeee\nv_cndmask_b32 v{vIDX}, v{vIDX}, v24, s[{sMC}:{sMC+1}]')
    A(f's_lshl_b32 s{sT}, s{sRANK}, 6')
    A(f'v_lshrrev_b32 v24, 3, v20\nv_lshl_add_u32 v24, v21, 3, v24\nv_lshlrev_b32 v24, 11, v24\nv_and_b32 v25, 7, v20\nv_lshl_add_u32 v24, v25, 3, v24\nv_add_u32 v{vRSA}, s{sT}, v24')
    A(f'v_lshl_add_u32 v24, v21, 2, v23\nv_add_u32 v24, 64, v24\nv_lshlrev_b32 v24, 11, v24\nv_lshl_add_u32 v24, v22, 2, v24\nv_add_u32 v{vRSC}, s{sT}, v24')
    A(f's_lshl_b32 s{sT}, s{sWAVE}, 5\ns_add_u32 s{sT}, s{sT}, s{sRANK}')
    A(f's_cmp_lt_u32 s{sT}, 80\ns_cselect_b32 s{sRED}, 1, 0\ns_cselect_b32 s{sT}, s{sT}, 0\ns_lshl_b32 s{sINB}, s{sT}, 11')
    A('v_and_b32 v26, 3, v22\nv_lshrrev_b32 v27, 1, v23\nv_and_b32 v29, 1, v23')
    A(f's_cmp_lt_u32 s{sWAVE}, 2\ns_cbranch_scc0 {L("segC")}')
    A(f's_lshr_b32 s50, s{sRANK}, 3\ns_lshr_b32 s51, s{sRANK}, 1\ns_and_b32 s51, s51, 3\ns_and_b32 s55, s{sRANK}, 1\ns_and_b32 s52, s50, 1\ns_lshl_b32 s52, s52, 1\ns_add_u32 s52, s52, s55')
    A(f's_lshr_b32 s53, s50, 1\ns_lshl_b32 s56, s{sWAVE}, 1\ns_add_u32 s53, s53, s56')
    A(f's_lshl_b32 s54, s{sWAVE}, 7\ns_lshl_b32 s56, s50, 5\ns_add_u32 s54, s54, s56\ns_lshl_b32 s56, s55, 3\ns_add_u32 s54, s54, s56\ns_mov_b32 s55, 32')
    A('v_lshl_add_u32 v28, v26, 1, v29')
    A(f's_branch {L("segD")}\n{L("segC")}:')
    A(f's_lshr_b32 s50, s{sRANK}, 2\ns_and_b32 s50, s50, 3\ns_and_b32 s51, s{sRANK}, 3\ns_mov_b32 s52, s50\ns_mov_b32 s53, 4\ns_lshl_b32 s54, s50, 4\ns_add_u32 s54, s54, 256\ns_mov_b32 s55, 2')
    A('v_lshl_add_u32 v28, v26, 1, v29\nv_lshlrev_b32 v28, 1, v28')
    A(f'{L("segD")}:')
    A(f's_lshl_b32 s53, s53, 10\ns_lshl_b32 s52, s52, 8\ns_add_u32 s53, s53, s52\ns_lshl_b32 s56, s51, 6\ns_add_u32 s53, s53, s56')
    A('v_lshrrev_b32 v24, 1, v26\nv_lshl_add_u32 v24, v24, 1, v27\nv_lshlrev_b32 v24, 4, v24\nv_and_b32 v25, 1, v26\nv_lshl_add_u32 v24, v25, 3, v24\nv_lshl_add_u32 v24, v29, 2, v24')
    A(f'v_add_u32 v24, s53, v24\nv_cmp_gt_u32 vcc, 4, v22\nv_mov_b32 v25, {hex(OOB)}\ns_nop 1\nv_cndmask_b32 v{vPUB}, v25, v24, vcc')
    A(f's_mul_i32 s56, s{sTEAM}, 320\ns_add_u32 s54, s54, s56\ns_mul_i32 s56, s51, 1280\ns_add_u32 s54, s54, s56')
    A('v_mul_u32_u24 v24, 640, v27\nv_add3_u32 v28, v24, v28, s54\nv_lshlrev_b32 v28, 1, v28')
    A(f's_lshl_b32 s{sT2}, s{sRANK}, 14\ns_lshl_b32 s{sT3}, s{sWAVE}, 12\ns_add_u32 s{sKV}, s{sT2}, s{sT3}')
    A(f'v_lshlrev_b32 v24, 7, v20\nv_add_u32 v26, s{sKV}, v24')
    A(f's_lshl_b32 s{sT2}, s{sTEAM}, 13\ns_add_u32 s{sAGL}, s{sT2}, {AGL_OFF}\ns_mul_i32 s{sT3}, s{sWAVE}, 1280\ns_add_u32 s{sT2}, s{sAGL}, s{sT3}\ns_sub_u32 s{sT2}, s{sT2}, 4096')
    A(f'v_add_u32 v24, s{sT2}, v24\nv_cmp_gt_u32 vcc, 32, v20\ns_nop 1\nv_cndmask_b32 v24, v24, v26, vcc\nv_cmp_gt_u32 vcc, 42, v20\ns_nop 1\nv_cndmask_b32 v{vTCH}, v25, v24, vcc')
    A(f'v_lshl_add_u32 v{vSW}, v21, 10, v{vL16}\nv_lshl_add_u32 v24, v21, 2, v{vL16}\nv_add_u32 v{vT0W}, {LDS_T0}, v24')
    A(f'v_lshrrev_b32 v24, 1, v21\nv_lshlrev_b32 v24, 10, v24\nv_and_b32 v25, 1, v21\nv_lshl_add_u32 v24, v25, 5, v24\nv_add_u32 v24, {LDS_O}, v24\nv_add_u32 v{vOW}, v24, v{vL16}')
    A(f's_mul_i32 s57, s{sWAVE}, {LDS_WW}\ns_add_u32 s57, s57, {LDS_W}\nv_add_u32 v{vWB}, s57, v{vL16}')
    A('v_lshrrev_b32 v24, 3, v22\nv_lshlrev_b32 v24, 4, v24\nv_mov_b32 v25, 0x3f80\nv_lshlrev_b32 v24, v24, v25\nv_and_b32 v26, 7, v22')
    for dw in range(4): A(f'v_cmp_eq_u32 vcc, {4*(dw>>1)+(dw&1)}, v26\ns_nop 1\nv_cndmask_b32 v{vSEL+dw}, 0, v24, vcc')
    A('v_and_b32 v24, 1, v22\nv_lshlrev_b32 v24, 4, v24\nv_lshlrev_b32 v24, v24, v25\nv_lshrrev_b32 v26, 1, v22\nv_lshlrev_b32 v27, 1, v23\nv_sub_u32 v26, v26, v27')
    for x in range(2): A(f'v_cmp_eq_u32 vcc, {x}, v26\ns_nop 1\nv_cndmask_b32 v{vID+x}, 0, v24, vcc')
    A('v_and_b32 v24, 1, v23\nv_lshrrev_b32 v25, 1, v23\nv_lshlrev_b32 v26, 1, v23\nv_xor_b32 v26, v26, v22')
    A('v_lshrrev_b32 v29, 1, v21\nv_and_b32 v30, 1, v21')
    A('v_lshlrev_b32 v31, 4, v24\nv_lshl_add_u32 v31, v25, 2, v31\nv_lshl_add_u32 v31, v29, 5, v31\nv_lshl_add_u32 v31, v30, 3, v31\nv_lshlrev_b32 v31, 13, v31')
    A('v_lshl_add_u32 v32, v25, 3, v24\nv_lshl_add_u32 v32, v21, 4, v32\nv_lshlrev_b32 v32, 13, v32')
    A('v_lshl_add_u32 v33, v25, 5, v24\nv_lshl_add_u32 v33, v21, 2, v33\nv_mul_u32_u24 v33, 1280, v33')
    for var in range(2):
        if var: A('v_xor_b32 v26, 8, v26')
        A(f'v_lshl_add_u32 v{60+var}, v26, 4, v31\nv_lshl_add_u32 v{62+var}, v26, 4, v32\nv_lshl_add_u32 v{64+var}, v26, 4, v33')
        A(f'v_bfe_u32 v27, v26, 1, 1\nv_mul_u32_u24 v27, {64*1280}, v27\nv_add_u32 v27, v27, v33\nv_lshrrev_b32 v34, 2, v26\nv_lshl_add_u32 v27, v34, 5, v27\nv_and_b32 v34, 1, v26\nv_lshl_add_u32 v{66+var}, v34, 4, v27')
    A('v_bfe_u32 v26, v20, 2, 2\nv_lshl_add_u32 v27, v24, 2, v26\nv_lshlrev_b32 v27, 1, v27\nv_bfe_u32 v29, v20, 1, 1\nv_lshl_add_u32 v29, v21, 2, v29\nv_xor_b32 v29, v29, v27\nv_lshlrev_b32 v29, 4, v29')
    A(f'v_lshl_add_u32 v26, v24, 3, v26\nv_lshl_add_u32 v29, v26, 8, v29\nv_and_b32 v26, 1, v20\nv_lshl_add_u32 v29, v26, 3, v29\nv_mul_u32_u24 v26, {LDS_WW}, v25\nv_add_u32 v26, {LDS_W}, v26')
    A(f'v_add_u32 v68, v29, v26\nv_xor_b32 v29, 32, v29\nv_add_u32 v69, v29, v26\nv_add_u32 v70, {2*LDS_WW}, v68\nv_add_u32 v71, {2*LDS_WW}, v69')
    A('s_load_dwordx2 s[58:59], s[0:1], 8\ns_load_dwordx8 s[60:67], s[0:1], 16')
    A(f's_lshl_b32 s68, s{sRANK}, 8\ns_mul_i32 s{sT2}, s{sTEAM}, {320*8192}\ns_add_u32 s69, s68, s{sT2}\ns_sub_u32 s70, s68, s{sT2}\ns_add_u32 s70, s70, {320*8192}')
    A(f's_mul_i32 s71, s{sRANK}, {128*1280}\ns_mul_i32 s{sT2}, s{sTEAM}, 640\ns_add_u32 s71, s71, s{sT2}')
    A('s_waitcnt lgkmcnt(0)')
    allu=[(k,f) for k,n in (('q',10),('k',10),('v',10),('o',5)) for f in range(n)]
    units=[u for u in allu if u not in LDS_UNITS]+sorted(LDS_UNITS)
    NS=9; pq=Q(); cur=[None]
    def setsrd(kind):
        if cur[0]!=kind:
            cur[0]=kind
            A.srd(S_T0,{'q':60,'k':62,'v':64,'o':66,'m':58}[kind],10240 if kind=='m' else 5242880)
    def issue(i):
        kind,f=units[i]; setsrd(kind)
        sl=i%NS
        for io in range(4):
            if kind!='o':
                base='s69' if f<5 else 's70'
                isC=(f%5==4)
                off_=(64*(f%5)+(2*io if isC else io))*8192; vo=62 if isC else 60
            else:
                base='s71'; e=16*(io>>1)+2*(io&1)
                if f<4: off_=(64*(f&1)+e)*1280+256*(f>>1); vo=64
                else: off_=e*1280+512; vo=66
            A(f's_add_u32 m0, s57, {sl*4096+io*1024}\ns_add_u32 s{sT2}, {base}, {off_}')
            A(f'buffer_load_dwordx4 v{vo+(io>>1)}, s[{S_T0}:{S_T0+3}], s{sT2} offen lds'); pq.push(f'u{i}')
    for i in range(depth): issue(i)
    A(f's_add_u32 s{sAGL4}, s{sAGL}, 4096')
    A(f's_lshl_b32 s{sT2}, s{sTEAM}, 20\ns_add_u32 s{sPUBR}, s{sT2}, {WS_AGR}')
    A(f's_mul_i32 s{sT2}, s{sTEAM}, {2*RING_SLOT}\ns_add_u32 s{sRING}, s{sT2}, {WS_RING}\ns_add_u32 s{sT3}, s{sRING}, {RING_SLOT}\ns_xor_b32 s{sRINGX}, s{sRING}, s{sT3}')
    A(f's_add_u32 s{sT2}, s{sINB}, s{sRING}\ns_add_u32 s{sINB}, s{sINB}, s{sT3}\ns_xor_b32 s{sINBX}, s{sINB}, s{sT2}')
    A(f's_mov_b32 s{sTOUCH}, {SEGB}\ns_mov_b32 s{sSTEP}, 0\ns_mov_b32 s{sTMO}, 0\ns_mov_b32 s{sRDY}, 0')
    A(f's_mov_b32 s{sC}, {hex(0x3e0293ee)}')
    A(f's_mul_i32 s{sT2}, s{sRANK}, 6144\ns_mul_i32 s{sT3}, s{sWAVE}, 1536\ns_add_u32 s{sKVM}, s{sT2}, s{sT3}\ns_add_u32 s{sKVM}, s{sKVM}, {WS_KVM}')
    A(f's_lshl_b32 s{sT2}, s{sTEAM}, 5\ns_add_u32 s{sT}, s{sT2}, s{sRANK}\ns_lshl_b32 s{sFLG}, s{sT}, 7\ns_add_u32 s{sFLG}, s{sFLG}, {FL_KVM}')
    def st(x): A(x); pq.push('arm')
    for r in range(36,40): A(f'v_mov_b32 v{r}, -1')
    A(f's_lshl_b32 s{sT2}, s{sRANK}, 15\ns_add_u32 s{sT2}, s{sT2}, s{sPUBR}\ns_lshl_b32 s{sT3}, s{sWAVE}, 13\ns_add_u32 s{sT3}, s{sT3}, s{sT2}')
    for k in range(4): st(f'buffer_store_dwordx4 v[36:39], v{vL16}, {ws}, s{sT3} offen offset:{1024*k} sc1')
    A(f's_add_u32 s{sT3}, s{sT3}, 4096'); st(f'buffer_store_dwordx4 v[36:39], v{vL16}, {ws}, s{sT3} offen sc1')
    A(f's_mul_i32 s{sT2}, s{sRANK}, {2*SEGB}\ns_add_u32 s{sT2}, s{sT2}, s{sAGL}\ns_lshl_b32 s{sT3}, s{sWAVE}, 10\ns_add_u32 s{sT3}, s{sT3}, s{sT2}')
    st(f'buffer_store_dwordx4 v[36:39], v{vL16}, {ws}, s{sT3} offen sc1'); A(f's_add_u32 s{sT3}, s{sT3}, {SEGB}'); st(f'buffer_store_dwordx4 v[36:39], v{vL16}, {ws}, s{sT3} offen sc1')
    A(f's_and_b32 s{sT3}, s{sWAVE}, 1\ns_mul_i32 s{sT3}, s{sT3}, {SEGB}\ns_add_u32 s{sT3}, s{sT3}, s{sT2}\ns_add_u32 s{sT3}, s{sT3}, 4096'); st(f'buffer_store_dwordx4 v[36:39], v{vL16}, {ws}, s{sT3} offen sc1')
    A(f's_xor_b32 s{sT3}, s{sINB}, s{sINBX}')
    for base in (sINB,sT3):
        for j in range(2): st(f'buffer_store_dwordx4 v[36:39], v{vL16}, {ws}, s{base} offen offset:{1024*j} sc1')
    if fused:
        A(f's_lshl_b32 s{sT}, s{sT}, 2\ns_add_u32 s{sT}, s{sT}, s{sWAVE}\ns_lshl_b32 s{sT}, s{sT}, 8\ns_add_u32 s{sT}, s{sT}, {WS_FLAG}\nv_mov_b32 v24, 0\nv_lshlrev_b32 v25, 2, v20')
        st(f'buffer_store_dword v24, v25, {ws}, s{sT} offen sc1')
    setsrd('m')
    st(f'buffer_load_ushort v35, v28, s[{S_T0}:{S_T0+3}], 0 offen'); st(f'buffer_load_ushort v29, v28, s[{S_T0}:{S_T0+3}], s55 offen')
    lds={}; pend=[]
    for i,(kind,f) in enumerate(units):
        A(f's_waitcnt vmcnt({pq.wait(f"u{i}")}) lgkmcnt(0)\ns_barrier')
        if i==depth:
            assert not pq.has('arm')
            A(f'v_lshl_or_b32 v{vT2}, v29, 16, v35\nv_min_u32 v{vT2}, -2, v{vT2}')
            A(f's_cmp_lg_u32 s{sWAVE}, 0\ns_cbranch_scc1 {L("noarr")}\ns_mov_b64 exec, 1\nv_mov_b32 v36, s{sPOL}\nbuffer_atomic_add v36, off, s[{S_DBG}:{S_DBG+3}], 0 offset:{DBG_INIT} sc1\ns_mov_b64 exec, -1\n{L("noarr")}:')
        if i+depth<len(units): issue(i+depth)
        for z in pend: A(z)
        pend=[]
        sl=i%NS
        tmp=[('v',72+16*(i&1)),('v',80+16*(i&1))] if False else [('v',(40,84)[i&1]),('v',(48,92)[i&1])]
        for t in range(2):
            dst=UR.get((kind,f,t),tmp[t])
            for p in range(4):
                A(f'ds_read_b64_tr_b16 {R(dst,2,2*p)}, v{68+2*(p>>1)+t} offset:{sl*4096+(p&1)*1024}')
        for t in range(2):
            if (kind,f,t) not in UR:
                o = NS*4096 if (kind,f)==HALF else sl*4096+t*2048
                lds[(kind,f,t)]=o
                pend+=[f'ds_write_b128 v{vWB}, {R(tmp[t],4)} offset:{o}',f'ds_write_b128 v{vWB}, {R(tmp[t],4,4)} offset:{o+1024}']
    A('s_waitcnt lgkmcnt(0)\ns_barrier')
    for z in pend: A(z)
    def WO(tile,kap): return UR[('o',4,kap)] if tile==4 else UR[('o',2*(tile>>1)+kap,tile&1)]
    A(f's_mov_b32 s{S_T0}, s{S_WS}\ns_mov_b32 s{S_T0+1}, s{S_WS+1}\ns_cmp_eq_u32 s{sRED}, 1\ns_cselect_b32 s{S_T0+2}, {hex(WS_SIZE)}, 0')
    A(f's_mov_b32 s{S_P}, s{S_WS}\ns_mov_b32 s{S_P+1}, s{S_WS+1}\ns_cmp_eq_u32 s{sTEAM}, 0\ns_cselect_b32 s{S_P+2}, {hex(WS_SIZE)}, 0\ns_mov_b32 s{S_P+3}, 0x00020000')
    rw=f's[{S_T0}:{S_T0+3}]'
    tmo=f's_add_u32 s{sTMO}, s{sTMO}, 1\ns_cmp_gt_u32 s{sTMO}, {CTMO}\ns_cbranch_scc1 {L("fail")}'
    A(f'{L("iw")}:\nbuffer_load_dword v36, off, s[{S_DBG}:{S_DBG+3}], 0 offset:{DBG_INIT} sc1\n{tmo}\ns_waitcnt vmcnt(0)\nv_readfirstlane_b32 s{sT}, v36\ns_and_b32 s{sT2}, s{sT}, 0xffff\ns_cmp_lt_u32 s{sT2}, 64\ns_cbranch_scc1 {L("iw")}')
    A(f's_lshr_b32 s{sT}, s{sT}, 16\ns_cmp_gt_u32 s{sT}, 32\ns_cselect_b32 s{sT}, 8192, 0')
    if polfix is not None: A(f's_mov_b32 s{sT}, {polfix*8192}')
    A(f's_add_u32 s{sPUBR}, s{sPUBR}, s{sT}\ns_xor_b32 s{sAGR}, s{sPUBR}, 0x100000\ns_add_u32 s{sAGR4}, s{sAGR}, 4096')
    A(f's_xor_b32 s{sT3}, s{sINB}, s{sINBX}')
    for base in (sINB,sT3):
        for j in range(2): A(f'buffer_load_dwordx4 v[16:19], v{vL16}, {rw}, s{base} offen offset:{1024*j} sc1')
    def kvwait(lab,back):
        A(f'{lab}:\nv_lshrrev_b32 v{vST}, 4, v{vL16}\nv_and_b32 v{vST+1}, 1, v{vST}\nv_bfe_u32 v{vST+2}, v{vST}, 1, 1\nv_mul_u32_u24 v{vST+3}, 96, v{vST+1}\nv_lshl_add_u32 v{vST+2}, v{vST+2}, 5, v{vST+3}\nv_add_u32 v{vST+2}, s{sRANK}, v{vST+2}\nv_lshlrev_b32 v{vST+2}, 7, v{vST+2}\nv_add_u32 v{vST+2}, {FL_QKV}, v{vST+2}')
        A(f'{lab}b:\nbuffer_load_dword v{vST+3}, v{vST+2}, {ws}, 0 offen sc1\n{tmo}\ns_waitcnt vmcnt(0)\nv_lshl_add_u32 v{vST+3}, v{vST+3}, 1, v{vST+1}\ns_nop 0')
        A(f'v_readlane_b32 s{sRDY}, v{vST+3}, 0\nv_readlane_b32 s{sT}, v{vST+3}, 1\nv_readlane_b32 s{sT2}, v{vST+3}, 2\nv_readlane_b32 s{sT3}, v{vST+3}, 3')
        A(f's_min_u32 s{sRDY}, s{sRDY}, s{sT}\ns_min_u32 s{sT2}, s{sT2}, s{sT3}\ns_min_u32 s{sRDY}, s{sRDY}, s{sT2}')
        A(f's_cmp_le_u32 s{sRDY}, s{sSTEP}\ns_cbranch_scc1 {lab}b')
        A(f's_and_b32 s{sT}, s{sRDY}, -8\ns_cmp_gt_u32 s{sT}, s{sSTEP}\ns_cselect_b32 s{sRDY}, s{sT}, s{sRDY}\ns_cmp_ge_u32 s{sRDY}, 64\ns_cselect_b32 s{sRDY}, 99, s{sRDY}')
        if back: A(f's_branch {back}')
    if diag: A(f's_memrealtime s[92:93]\ns_mov_b32 s98, s{sT}')
    if fused:
        kvwait(L('kv0'),None)
        A(f'buffer_load_dword v36, off, s[{S_DBG}:{S_DBG+3}], 0 offset:{DBG_X0} sc1\nbuffer_load_dword v37, off, s[{S_DBG}:{S_DBG+3}], 0 offset:{DBG_X1} sc1')
    A(f'buffer_load_dword v{vT1}, v{vTCH}, {ws}, 0 offen sc1')
    A('s_waitcnt vmcnt(0) lgkmcnt(0)')
    if diag: A('s_memrealtime s[94:95]\ns_waitcnt lgkmcnt(0)')
    if stamps: A('s_memtime s[76:77]\ns_waitcnt lgkmcnt(0)\n'+'\n'.join(f's_mov_b32 s{r}, 0' for r in range(78,100)))
    if fused:
        A(f'v_min_u32 v36, v36, v37\ns_nop 0\nv_readfirstlane_b32 s{sT}, v36\ns_cmp_lt_u32 s{sT}, 32\ns_cbranch_scc1 {L("slowmode")}')
    chain_loop(A,False,'',lds,WO,kvwait,fused,stamps,nsteps,**kw)
    if fused:
        A(f'{L("slowmode")}:')
        chain_loop(A,True,'_s',lds,WO,kvwait,fused,0,nsteps,**kw)
    A(f'{L("fail")}:\n{L("done")}:')
    A('s_waitcnt vmcnt(0)')

def chain_loop(A, fallback, sfx, lds, WO, kvwait, fused, stamps, nsteps, g_rs=(16,12,12), g_ag=(24,8,8,8,8), remgap=(4,8,12,16,20), pubpos=-1, dvp=(1,4,5), off='', trace=0):
    sc='sc1' if fallback else ''
    L=lambda n: f'L_{n}' if n in ('fail','done') else f'L_{n}{sfx}'
    ws=f's[{S_WS}:{S_WS+3}]'; rw=f's[{S_T0}:{S_T0+3}]'; pw=f's[{S_P}:{S_P+3}]'
    tmo=f's_add_u32 s{sTMO}, s{sTMO}, 1\ns_cmp_gt_u32 s{sTMO}, {CTMO}\ns_cbranch_scc1 {L("fail")}'
    stamp_n=[0]
    def stamp(grp=1):
        if stamps and (grp & int(stamps)):
            A(f's_memtime s[{50+2*stamp_n[0]}:{51+2*stamp_n[0]}]'); stamp_n[0]+=1
    vm=Q(); lg=Q(); retry=[]
    acc={'q0':vACC,'q1':vACC+4,'k0':vACC+8,'k1':vACC+12,'v0':vACC+16,'v1':vACC+20}
    q0,q1,k0,k1,v0,v1=[acc[x] for x in ('q0','q1','k0','k1','v0','v1')]
    def nops(n):
        while n>0:
            k=min(n,16); A(f's_nop {k-1}'); n-=k
    def agload(f):
        base=(sAGL if f<4 else sAGL4) if f<5 else (sAGR if f<9 else sAGR4)
        return f'buffer_load_dwordx4 v[{AREG[f]}:{AREG[f]+3}], v{vL16}, {ws}, s{base} offen offset:{((f%5)%4)*1024} sc1'
    issued=set()
    def ag(f): A(agload(f)); vm.push(f'ag{f}'); issued.add(f)
    def T(s): return (s[0],int(s[1]),int(s[2]))
    order=[T(x) for x in ('v00 q00 k00 v01 q01 v10 k01 k10 v11 k11 q10 q20 k20 q11 q21 v20 k21 q30 v21 k30 v30 q31 k31 v31 q40 v40 k40 q41 v41 k41 '
                          'k50 q50 k51 q51 k60 q61 q60 k61 k70 q70 k71 q71 q80 k80 q81 k81 q90 k90 q91 k91').split()]
    assert len(order)==50 and len(set(order))==50
    ll=[x for x in order if x in lds]; assert len(ll)==19
    stbuf={x:vST+8*(i%3) for i,x in enumerate(ll)}
    def rdhalf(x,h):
        if 'l' in off: return
        A(f'ds_read_b128 v[{stbuf[x]+4*h}:{stbuf[x]+4*h+3}], v{vWB} offset:{lds[x]+1024*h}'); lg.push(f'{x}{h}')
    def smf(d,a,b): A(f'v_smfmac_f32_16x16x64_bf16 v[{d}:{d+3}], v[{a}:{a+3}], {b}, v{vIDX}')
    def mm(x):
        kind,f,t=x
        smf(acc[f'{kind}{t}'],AREG[f],f'v[{stbuf[x]}:{stbuf[x]+7}]' if x in lds else R(UR[x],8))
    def prestage():
        for x in ll[:3]:
            for h in range(2): rdhalf(x,h)
    zs=list(range(vACC+5,vACC+24))+list(range(vACC,vACC+5))
    def zero_acc():
        for r in zs: A(f'v_mov_b32 v{r}, 0')
    zero_acc()
    A(f's_cmp_eq_u32 s{sRED}, 1\ns_cbranch_scc1 {L("pub2")}')
    A(f'{L("top")}:')
    stamp(4)
    A('s_barrier')
    stamp(4)
    if trace:
        A(f's_memtime s[74:75]\ns_lshl_b32 s{sT2}, s{sWAVE}, 6\ns_add_u32 s{sT2}, s{sT2}, s{sSTEP}\ns_lshl_b32 s{sT2}, s{sT2}, 2\nv_mov_b32 v{vT1}, s{sT2}\ns_waitcnt lgkmcnt(0)\nv_mov_b32 v{vT0}, s74\nds_write_b32 v{vT1}, v{vT0} offset:7168'); lg.push('x')
    prestage()
    pubR=f'buffer_store_dword v{vT2}, v{vPUB}, {rw}, s{sPUBR} offen sc1'
    for f in range(5):
        nops(g_ag[f]); ag(f)
        if pubpos==f: A(pubR); vm.push('pr')
    for k,f in enumerate(range(5,9)):
        if remgap[k]<0: nops(-remgap[k]); ag(f)
    stamp(4)
    def ckA(f):
        if 'c' in off and f: A(f's_waitcnt vmcnt({vm.wait(f"ag{f}")})'); return
        if '1' in off and f: return
        a=AREG[f]; A(f's_waitcnt vmcnt({vm.wait(f"ag{f}")})\nv_max3_u32 v{vT1}, v{a}, v{a+1}, v{a+2}')
    def ckB(f):
        if ('c' in off or '1' in off) and f: return
        A(f'v_max_u32 v{vT1}, v{vT1}, v{AREG[f]+3}')
    def ckC(f):
        if 'c' in off and f: return
        if '1' in off and f: A(f's_waitcnt vmcnt({vm.wait(f"ag{f}")})\nv_cmp_eq_u32 vcc, -1, v{AREG[f]+3}'); return
        A(f'v_cmp_eq_u32 vcc, -1, v{vT1}')
    def ckD(f):
        A(f's_cbranch_vccnz {L(f"rt{f}")}\n{L(f"ok{f}")}:')
        retry.append((f,[g for g in range(f,5 if f<5 else 10) if g in issued]))
    ckA(0); ckB(0); ckC(0); ckD(0)
    stamp(5)
    n=len(order); gaps=[[] for _ in range(n+2)]
    first={f:min(i for i,x in enumerate(order) if x[1]==f) for f in range(10)}
    last={f:max(i for i,x in enumerate(order) if x[1]==f) for f in range(10)}
    prev=-99
    for f in range(1,10):
        u=first[f]
        if f<9: u=min(u,first[f+1]-4) if False else u
        gaps[u].append((0,lambda f=f: ckD(f)))
        assert u-4>=prev, (f,u,prev)
        gaps[u-2].append((2,lambda f=f: ckC(f))); gaps[u-3].append((2,lambda f=f: ckB(f))); gaps[u-4].append((2,lambda f=f: ckA(f)))
        prev=u if u-4>=prev else prev
    for i,x in enumerate(ll):
        u=order.index(x)
        gaps[u].append((9,lambda x=x: A(f's_waitcnt lgkmcnt({lg.wait(f"{x}1")})') if lg.has(f'{x}1') else None))
        if i+3<len(ll):
            y=ll[i+3]
            gaps[u+1].append((1,lambda y=y: rdhalf(y,0))); gaps[u+2].append((1,lambda y=y: rdhalf(y,1)))
    for k,f in enumerate(range(5,10)):
        if remgap[k]>=0: gaps[remgap[k]].append((3,lambda f=f: ag(f)))
    assert remgap[4]>last[0]
    def kvload(f):
        if 'k' in off: return
        A(f'buffer_load_dwordx4 v[{AREG[f]}:{AREG[f]+3}], v{vL16}, {ws}, s{sKV} offen offset:{1024*(f-1)} sc1'); vm.push(f'kv{f}')
    for f in range(1,5): gaps[max(last[f]+1,remgap[4]+4*f)].append((3,lambda f=f: kvload(f)))
    for i in range(n):
        for _,fn in sorted(gaps[i],key=lambda z:z[0]): fn()
        if i==30: stamp()
        if i in (5,11,17,24,30,38): stamp(4)
        mm(order[i])
    assert not gaps[n] and not gaps[n+1]
    stamp()
    dq=[('v',f,t) for f in range(5,10) for t in range(2)]
    def dv(n,between=None):
        for _ in range(n):
            if dq:
                mm(dq.pop(0))
                if between: A(between.pop(0))
    def padd(d,x,y): A(f'v_pk_add_f32 v[{d}:{d+1}], v[{x}:{x+1}], v[{y}:{y+1}]')
    def cvt(d,x,y): A(f'v_cvt_pk_bf16_f32 v{d}, v{x}, v{y}')
    A(f's_add_u32 s{sSTEP}, s{sSTEP}, 1\ns_add_u32 s{sRINGB}, s{sRING}, 65536')
    if fused: A(f's_cmp_ge_u32 s{sSTEP}, s{sRDY}\ns_cbranch_scc1 {L("kvw")}\n{L("kvok")}:\ns_nop 0')
    else: A('s_nop 2')
    padd(q0,q0,q0+2); padd(k0,k0,k0+2); padd(q1,q1,q1+2); padd(k1,k1,k1+2)
    cvt(k0,k0,k0+1); cvt(k0+1,q0,q0+1); cvt(k0+2,k1,k1+1); cvt(k0+3,q1,q1+1)
    A(f'v_mfma_f32_16x16x16_bf16 v[{q0}:{q0+3}], v[{k0}:{k0+1}], v[{vID}:{vID+1}], 0')
    A(f's_mov_b64 vcc, s[{sMC}:{sMC+1}]')
    A(f'v_mfma_f32_16x16x16_bf16 v[{q1}:{q1+3}], v[{k0+2}:{k0+3}], v[{vID}:{vID+1}], 0')
    for r in range(4): A(f'v_mov_b32 v{vT0+r}, -1')
    A('s_waitcnt vmcnt(0)\ns_nop 0'); vm.q=[]
    X=k1
    cvt(X,q0,q0+1); cvt(X+1,q0+2,q0+3); cvt(X+2,q1,q1+1); cvt(X+3,q1+2,q1+3)
    A(f's_add_u32 s{sKV}, s{sKV}, {SEGB}\ns_nop 0')
    stamp()
    T1,T2,T0=q0,q1,k0
    A(f'v_mfma_f32_16x16x32_bf16 v[{T1}:{T1+3}], v[{vKX}:{vKX+3}], v[{X}:{X+3}], 0')
    A(f'v_mfma_f32_16x16x32_bf16 v[{T2}:{T2+3}], v[{vKX+4}:{vKX+7}], v[{X}:{X+3}], 0')
    A(f'v_mfma_f32_16x16x32_bf16 v[{T0}:{T0+3}], v[{X}:{X+3}], v[{X}:{X+3}], 0')
    ra=[f'buffer_store_dwordx4 v[{vT0}:{vT0+3}], v{vL16}, {rw}, s{sINB} offen offset:{1024*j} {sc}' for j in range(2)]
    if 't' not in off: A(f'buffer_load_dword v{vKX+7}, v{vTCH}, {ws}, s{sTOUCH} offen sc1'); vm.push('tch')
    else: A('s_nop 0')
    A(f'buffer_store_dwordx4 v[{X}:{X+3}], v{vL16}, {pw}, s{sKVM} offen sc1'); vm.push('kp')
    dv(dvp[0]); A(f's_add_u32 s{sTOUCH}, s{sTOUCH}, {SEGB}'); nops(4-dvp[0])
    dq2='quad_perm:[2,3,0,1] row_mask:0xf bank_mask:0xf'
    U=k1
    for r in range(4): A(f'v_cndmask_b32_dpp v{U+r}, v{T1+r}, v{T2+r}, vcc {dq2}')
    A(f'ds_write_b128 v{vSW}, v[{U}:{U+3}]'); lg.push('x')
    A(f'v_cndmask_b32_dpp v{T0+2}, v{T0}, v{T0+1}, vcc {dq2}')
    A(f'ds_write_b32 v{vT0W}, v{T0+2}'); lg.push('S')
    xa=vKX+4
    bt=[f'v_xor_b32 v{xa+k}, {1024*(k+1)}, v{vSW}' for k in range(3)]
    bt.append(ra[0]); vm.push('ra')
    A(bt.pop(0)); dv(dvp[1],bt)
    for z in bt: A(z)
    A(f's_waitcnt lgkmcnt({lg.wait("S")})')
    stamp()
    A('s_barrier')
    a=vACC; tz=vKX
    A(f'ds_read_b128 v[{tz}:{tz+3}], v{vL16} offset:{LDS_T0}')
    for k in range(3): A(f'ds_read_b128 v[{a+4*k}:{a+4*k+3}], v{xa+k}')
    A(f's_cmp_lg_u32 s{sWAVE}, 3\ns_cbranch_scc0 {L("flg")}\n{L("flgok")}:')
    bt=[ra[1]]; vm.push('ra')
    dv(dvp[2],bt)
    for z in bt: A(z)
    A('s_waitcnt lgkmcnt(0)'); lg.q=[]
    padd(tz,tz,tz+2); padd(a,a,a+4); padd(a+2,a+2,a+6); padd(a+8,a+8,a+12); padd(a+10,a+10,a+14)
    A(f'v_add_f32 v{a+4}, v{tz}, v{tz+1}')
    padd(a,a,a+8); padd(a+2,a+2,a+10)
    m,m2=a+5,a+6
    stamp()
    VM=a+8; zz=[VM+3,VM+4,VM+6,VM+7]
    ONE=vST+8; P=vST+12; O0=vST+16; O1=vST+4; SUM=vST; PMA=VM+2; PMB=VM+4
    def two():
        dv(1)
        for _ in range(2): A(f'v_mov_b32 v{zz.pop(0)}, 0')
    A(f'v_max3_f32 v{m}, v{a}, v{a+1}, v{a+4}\nv_max3_f32 v{m}, v{m}, v{a+2}, v{a+3}')
    A(f'v_mov_b32 v{ONE}, 0x3f803f80\nv_mov_b32 v{ONE+1}, 0x3f803f80')
    A(f'v_max_f32_dpp v{m}, v{m}, v{m} {dq2}')
    A(f'v_mov_b32 v{m2}, v{m}'); two(); A(f'v_permlane16_swap_b32 v{m}, v{m2}\nv_max_f32 v{m}, v{m}, v{m2}')
    A(f'v_mov_b32 v{m2}, v{m}'); two(); A(f'v_permlane32_swap_b32 v{m}, v{m2}\nv_max_f32 v{m}, v{m}, v{m2}')
    dv(len(dq))
    A(f'v_mul_f32 v{m}, s{sC}, v{m}\nv_lshrrev_b32 v{a+7}, 1, v{vL16}\ns_cmp_gt_u32 s{sSTEP}, {nsteps}')
    for r in range(5): A(f'v_fma_f32 v{a+r}, v{a+r}, s{sC}, -v{m}')
    for r in range(5): A(f'v_exp_f32 v{a+r}, v{a+r}')
    cvt(P,a,a+1); cvt(P+1,a+2,a+3)
    A(f'v_mov_b32_dpp v{m2}, v{a+4} {dq2}\nv_mov_b32_dpp v{P+2}, v{P} {dq2}\nv_mov_b32_dpp v{P+3}, v{P+1} {dq2}')
    padd(v0,v0,v0+2); padd(v1,v1,v1+2)
    if vm.has('kv4'): A(f's_waitcnt vmcnt({vm.wait("kv4")})')
    stamp()
    A(f'v_mfma_f32_16x16x32_bf16 v[{O0}:{O0+3}], v[{vVX}:{vVX+3}], v[{P}:{P+3}], 0')
    cvt(VM,v0,v0+1); cvt(VM+1,v1,v1+1)
    A(f'v_mfma_f32_16x16x32_bf16 v[{O1}:{O1+3}], v[{vVX+4}:{vVX+7}], v[{P}:{P+3}], 0')
    cvt(PMA,a+4,m2); cvt(PMB+1,a+4,m2)
    A(f'buffer_store_dwordx2 v[{VM}:{VM+1}], v{a+7}, {pw}, s{sKVM} offen offset:1024 sc1\ns_cbranch_scc1 {L("last")}')
    A(f'v_mfma_f32_16x16x32_bf16 v[{O0}:{O0+3}], v[{VM}:{VM+3}], v[{PMA}:{PMA+3}], v[{O0}:{O0+3}]')
    A(f'v_mov_b32 v{ONE+2}, 0x3f803f80\nv_mov_b32 v{ONE+3}, 0x3f803f80')
    A(f'v_mfma_f32_16x16x32_bf16 v[{O1}:{O1+3}], v[{VM}:{VM+3}], v[{PMB}:{PMB+3}], v[{O1}:{O1+3}]')
    dz=list(range(vA,vA+20))
    for _ in range(4): A(f'v_mov_b32 v{dz.pop(0)}, 0')
    A(f's_mov_b64 exec, s[{sM3}:{sM3+1}]')
    OQ=a
    cvt(OQ,O0,O0+1); cvt(OQ+1,O0+2,O0+3); A('s_nop 0'); cvt(OQ+2,O1,O1+1); cvt(OQ+3,O1+2,O1+3)
    A(f'ds_write_b128 v{vOW}, v[{OQ}:{OQ+3}]\ns_mov_b64 exec, -1')
    stamp()
    for _ in range(12): A(f'v_mov_b32 v{dz.pop(0)}, 0')
    D=[vA+4*t for t in range(5)]
    A('s_waitcnt lgkmcnt(0)\ns_barrier')
    stamp(3)
    OA=[a+16,a+20]
    A(f'ds_read_b128 v[{OA[0]}:{OA[0]+3}], v{vL16} offset:{LDS_O}\nds_read_b128 v[{OA[1]}:{OA[1]+3}], v{vL16} offset:{LDS_O+1024}')
    for _ in range(4): A(f'v_mov_b32 v{dz.pop(0)}, 0')
    A(f'v_mfma_f32_16x16x32_bf16 v[{SUM}:{SUM+3}], v[{P}:{P+3}], v[{ONE}:{ONE+3}], 0')
    A(f'v_mfma_f32_16x16x32_bf16 v[{SUM}:{SUM+3}], v[{PMB}:{PMB+3}], v[{ONE}:{ONE+3}], v[{SUM}:{SUM+3}]')
    A('s_waitcnt lgkmcnt(1)' if not stamps else 's_waitcnt lgkmcnt(0)')
    stamp(2)
    wo=lambda t,k: smf(D[t],OA[k],R(WO(t,k),8))
    RD=a
    sca=[f's_add_u32 s{sAGL}, s{sAGL}, {SEGB}',f's_add_u32 s{sAGL4}, s{sAGL4}, {SEGB}',f's_add_u32 s{sAGR}, s{sAGR}, 16384',f's_add_u32 s{sAGR4}, s{sAGR4}, 16384',f's_add_u32 s{sPUBR}, s{sPUBR}, 16384',f's_xor_b32 s{sINB}, s{sINB}, s{sINBX}']
    d=D[4]
    wo(4,0); A(f's_add_u32 s{sKVM}, s{sKVM}, {KVM_SEG}'); wo(0,0); A('s_waitcnt lgkmcnt(0)' if not stamps else 's_nop 0'); wo(4,1); A(f's_xor_b32 s{S_P+2}, s{S_P+2}, {hex(WS_SIZE)}'); A(sca[0])
    wo(1,0); A(f'v_rcp_f32 v{SUM}, v{SUM}'); A(sca[1]); A(sca[2])
    wo(0,1); A(f'v_rcp_f32 v{SUM+1}, v{SUM+1}'); A(sca[3])
    wo(1,1); A(f'v_add_f32 v{d}, v{d}, v{d+2}'); A(sca[4])
    wo(2,0); A(f'v_add_f32 v{d+1}, v{d+1}, v{d+3}'); A(sca[5])
    wo(3,0); A(f'v_mul_f32 v{d}, v{d}, v{SUM}')
    wo(2,1); A(f'v_mul_f32 v{d+1}, v{d+1}, v{SUM+1}')
    wo(3,1); cvt(RD+4,d,d+1)
    stamp(2)
    A(f'buffer_store_dword v{RD+4}, v{vRSC}, {ws}, s{sRING} offen {sc}')
    def pmul(d): A(f'v_pk_mul_f32 v[{d}:{d+1}], v[{d}:{d+1}], v[{SUM}:{SUM+1}]')
    for t,base in ((0,sRING),(2,sRINGB)):
        padd(D[t],D[t],D[t]+2); padd(D[t+1],D[t+1],D[t+1]+2); pmul(D[t]); pmul(D[t+1]); cvt(RD+t,D[t],D[t]+1); cvt(RD+t+1,D[t+1],D[t+1]+1)
        stamp(2)
        A(f'buffer_store_dwordx2 v[{RD+t}:{RD+t+1}], v{vRSA}, {ws}, s{base} offen {sc}')
    stamp(3)
    zero_acc()
    A(f's_xor_b32 s{sRING}, s{sRING}, s{sRINGX}')
    A(f's_cmp_eq_u32 s{sRED}, 0\ns_cbranch_scc1 {L("send")}')
    RC=vA+16; RBUF=[vA,vA+8,vKX,vVX][:len(g_rs)]; nb=len(RBUF)
    def rsload(b):
        for j in range(2): A(f'buffer_load_dwordx4 v[{b+4*j}:{b+4*j+3}], v{vL16}, {ws}, s{sINB} offen offset:{1024*j} sc1')
    def rschk(b):
        n=2*(nb-1)
        A(f's_waitcnt vmcnt({n+1})\nv_mfma_f32_16x16x32_bf16 v[{RC}:{RC+3}], v[{vSEL}:{vSEL+3}], v[{b}:{b+3}], 0')
        A(f'v_max3_u32 v{vT1}, v{b}, v{b+1}, v{b+2}')
        A(f's_waitcnt vmcnt({n})\nv_mfma_f32_16x16x32_bf16 v[{RC}:{RC+3}], v[{vSEL}:{vSEL+3}], v[{b+4}:{b+7}], v[{RC}:{RC+3}]')
        A(f'v_max3_u32 v{vT0}, v{b+4}, v{b+5}, v{b+6}\nv_max3_u32 v{vT1}, v{vT1}, v{b+3}, v{b+7}\nv_max_u32 v{vT1}, v{vT1}, v{vT0}\nv_cmp_eq_u32 vcc, -1, v{vT1}')
    for k,b in enumerate(RBUF): nops(g_rs[k]); rsload(b)
    stamp(2)
    if stamps==2: A(f's_waitcnt vmcnt({2*(nb-1)})'); stamp(2)
    rschk(RBUF[0])
    A(f's_cbranch_vccnz {L("rs_1")}')
    A(f'{L("rsok")}:\ns_nop 2')
    A(f'v_add_f32_dpp v{RC+2}, v{RC}, v{RC} row_ror:4 row_mask:0xf bank_mask:0xf\nv_add_f32_dpp v{RC+3}, v{RC+1}, v{RC+1} row_ror:4 row_mask:0xf bank_mask:0xf\ns_nop 0')
    A(f'v_add_f32_dpp v{RC}, v{RC+2}, v{RC+2} row_ror:8 row_mask:0xf bank_mask:0xf\nv_add_f32_dpp v{RC+1}, v{RC+3}, v{RC+3} row_ror:8 row_mask:0xf bank_mask:0xf')
    cvt(vT2,RC,RC+1)
    A(f'v_min_u32 v{vT2}, -2, v{vT2}')
    A(f'{L("pub2")}:')
    A(f'buffer_store_dword v{vT2}, v{vPUB}, {ws}, s{sAGL} offen {sc}')
    if pubpos<0: A(pubR)
    A(f'{L("send")}:')
    stamp(7)
    if stamps:
        A('s_waitcnt lgkmcnt(0)')
        prev=76
        A(f's_sub_u32 s{sT2}, s{sSTEP}, 6\ns_cmp_ge_u32 s{sT2}, 24\ns_cbranch_scc1 {L("nacc")}')
        for i in range(stamp_n[0]):
            A(f's_sub_u32 s{sT2}, s{50+2*i}, s{prev}\ns_add_u32 s{78+i}, s{78+i}, s{sT2}'); prev=50+2*i
        A(f'{L("nacc")}:\ns_mov_b32 s76, s{prev}')
    A(f's_branch {L("top")}')
    A(f'{L("flg")}:\ns_sub_u32 s{sT}, s{sSTEP}, 1\nv_mov_b32 v{vST}, s{sT}\ns_mov_b64 exec, 1\nbuffer_store_dword v{vST}, off, {ws}, s{sFLG} sc1\ns_mov_b64 exec, -1\ns_branch {L("flgok")}')
    A(f'{L("rs_1")}:')
    for k in range(nb):
        rsload(RBUF[k])
        if stamps: A('s_add_u32 s98, s98, 1')
        rschk(RBUF[(k+1)%nb]); A(f's_cbranch_vccz {L("rsok")}')
    A(tmo); A(f's_branch {L("rs_1")}')
    for f,lst in retry:
        a_=AREG[f]
        A(f'{L(f"rt{f}")}:')
        for g in lst: A(agload(g))
        A(tmo)
        if stamps: A(f's_add_u32 s{96 if f<5 else 97}, s{96 if f<5 else 97}, {1 if f%5==0 else 0x10000}')
        A(f's_waitcnt vmcnt({len(lst)-1})')
        A(f'v_max3_u32 v{vT1}, v{a_}, v{a_+1}, v{a_+2}\nv_max_u32 v{vT1}, v{vT1}, v{a_+3}\nv_cmp_eq_u32 vcc, -1, v{vT1}\ns_cbranch_vccz {L(f"ok{f}")}\ns_branch {L(f"rt{f}")}')
    if fused: kvwait(L('kvw'),L('kvok'))
    A(f'{L("last")}:')
    A('s_waitcnt vmcnt(0)\ns_barrier')
    A(f'v_mov_b32 v{vT1}, s{sSTEP}\ns_mov_b64 exec, 1\nbuffer_store_dword v{vT1}, off, {ws}, s{sFLG} sc1\ns_branch {L("done")}')
```

```python
from asmlib import *
from layout import *
class Q:
    def __init__(s): s.q=[]
    def push(s,name,n=1): s.q+= [name]*n
    def wait(s,name):
        i=max(k for k,n in enumerate(s.q) if n==name)
        n=len(s.q)-1-i
        s.q=s.q[i+1:]
        return n
    def has(s,name): return name in s.q
S_WS=8; S_T0=12; S_DBG=16
WS=f's[{S_WS}:{S_WS+3}]'; T0=f's[{S_T0}:{S_T0+3}]'; DBG=f's[{S_DBG}:{S_DBG+3}]'
def nops(A,n):
    while n>0:
        k=min(n,16); A(f's_nop {k-1}'); n-=k
def cvt(A,d,x,y): A(f'v_cvt_pk_bf16_f32 v{d}, v{x}, v{y}')
```

```python
SEGB   = 0x84000
WS_KV  = 0
AGL_OFF= 0x80000
WS_Q   = 0x2400000
WS_KVM = 0x3400000
KVM_SEG= 32*6144
WS_O   = 0x4000000
WS_AGR = 0x5000000
WS_RING= 0x5200000
RING_SLOT=80*2048
WS_FLAG= 0x5600000
WS_SIZE= 268435456
OOB    = 0x40000000
FL_QKV = WS_FLAG
FL_KVM = WS_FLAG+0x6000
FL_O   = WS_FLAG+0xa000
WS_DIAG= 0x5800000
DBG_X0=0; DBG_X1=64
DBG_INIT=96
NINIT=64
```

```python
from common import *
sID,sWAVE,sTID=20,22,21
def qkv_code(A, flags=False, sfx='q'):
    L=lambda n: f'L_{n}{sfx}'
    sMAT,sHEAD,sHALF,sT,sT2,sOUT,sOSTR,sX,sIT,sM0,sFL=24,25,26,27,28,29,30,31,32,33,34
    vL=255
    A(f's_cmp_ge_u32 s{sID}, 96\ns_cselect_b32 s{sHALF}, 1, 0\ns_cselect_b32 s{sT}, 96, 0\ns_sub_u32 s{sT}, s{sID}, s{sT}')
    A(f's_lshr_b32 s{sMAT}, s{sT}, 5\ns_and_b32 s{sHEAD}, s{sT}, 31')
    A('s_load_dwordx2 s[36:37], s[0:1], 0\ns_load_dwordx2 s[38:39], s[0:1], 16\ns_load_dwordx4 s[40:43], s[0:1], 24\ns_waitcnt lgkmcnt(0)')
    A(f's_cmp_eq_u32 s{sMAT}, 1\ns_cselect_b32 s40, s42, s40\ns_cselect_b32 s41, s43, s41\ns_cmp_eq_u32 s{sMAT}, 2\ns_cselect_b32 s40, s38, s40\ns_cselect_b32 s41, s39, s41')
    A.srd(S_T0,40,5242880)
    A(f'v_and_b32 v1, 15, v{vL}\nv_lshrrev_b32 v2, 4, v{vL}')
    A('v_lshlrev_b32 v3, 1, v2\nv_xor_b32 v3, v3, v1\nv_lshlrev_b32 v3, 4, v3\nv_lshl_add_u32 v4, v2, 13, v3\nv_xor_b32 v5, 128, v4')
    A(f's_lshl_b32 s{sT}, s{sHEAD}, 8\ns_mul_i32 s{sT2}, s{sWAVE}, {160*8192}\ns_add_u32 s{sT}, s{sT}, s{sT2}\ns_mul_i32 s{sM0}, s{sWAVE}, 40960')
    for i in range(40):
        A(f's_mov_b32 m0, s{sM0}\ns_add_u32 s{sM0}, s{sM0}, 1024')
        A(f'buffer_load_dwordx4 v{4+((i>>1)&1)}, {T0}, s{sT} offen lds\ns_add_u32 s{sT}, s{sT}, 32768')
    A(f'v_bfe_u32 v6, v{vL}, 2, 2\nv_and_b32 v7, 1, v2\nv_lshl_add_u32 v7, v7, 2, v6\nv_lshlrev_b32 v7, 1, v7')
    A(f'v_bfe_u32 v8, v{vL}, 1, 1\ns_lshl_b32 s{sT}, s{sWAVE}, 2\nv_add_u32 v8, s{sT}, v8\nv_xor_b32 v8, v8, v7\nv_lshlrev_b32 v8, 4, v8')
    A(f'v_lshl_add_u32 v9, v2, 3, v6\nv_lshl_add_u32 v8, v9, 8, v8\nv_and_b32 v9, 1, v{vL}\nv_lshl_add_u32 v8, v9, 3, v8\nv_xor_b32 v9, 32, v8')
    A(f's_mul_i32 s{sT}, s{sWAVE}, 640\nv_add_u32 v20, s{sT}, v{vL}\ns_mov_b32 s{sT2}, 52429')
    for ii in range(10):
        A(f'v_mul_lo_u32 v21, v20, s{sT2}\nv_lshrrev_b32 v21, 22, v21\nv_mul_u32_u24 v22, 80, v21\nv_sub_u32 v23, v20, v22\nv_and_b32 v21, 15, v21\nv_xor_b32 v23, v23, v21\nv_add_lshl_u32 v{10+ii}, v22, v23, 4\nv_add_u32 v20, 64, v20')
    A('v_mul_u32_u24 v24, 1280, v1')
    for k in range(4): A(f'v_add_u32 v25, {4*k}, v2\nv_xor_b32 v25, v25, v1\nv_lshl_add_u32 v{20+k}, v25, 4, v24')
    A(f'v_lshlrev_b32 v0, 4, v{vL}')
    A(f's_lshl_b32 s{sT}, s{sHEAD}, 14\ns_lshl_b32 s{sT2}, s{sWAVE}, 12\ns_add_u32 s{sOUT}, s{sT}, s{sT2}\ns_lshl_b32 s{sT}, s{sMAT}, 11\ns_add_u32 s{sT}, s{sOUT}, s{sT}')
    A(f's_lshr_b32 s{sOUT}, s{sOUT}, 1\ns_add_u32 s{sOUT}, s{sOUT}, {WS_Q}\ns_cmp_eq_u32 s{sMAT}, 2\ns_cselect_b32 s{sOUT}, s{sOUT}, s{sT}\ns_mov_b32 s{sT2}, {SEGB}\ns_cselect_b32 s{sOSTR}, 0x40000, s{sT2}')
    A(f's_mul_i32 s{sT}, s{sHALF}, s{sOSTR}\ns_add_u32 s{sOUT}, s{sOUT}, s{sT}\ns_lshl_b32 s{sOSTR}, s{sOSTR}, 1')
    A(f's_mul_i32 s{sX}, s{sHALF}, 40960')
    A(f's_lshl_b32 s{sFL}, s{sID}, 7\ns_add_u32 s{sFL}, s{sFL}, {FL_QKV}')
    if flags:
        A(f's_mov_b32 s{sT}, 0\n{L("iw")}:\nbuffer_load_dword v30, off, {DBG}, 0 offset:{DBG_INIT} sc1\ns_add_u32 s{sT}, s{sT}, 1\ns_cmp_gt_u32 s{sT}, 1000000\ns_cbranch_scc1 L_end\ns_waitcnt vmcnt(0)\nv_and_b32 v30, 0xffff, v30\nv_cmp_gt_u32 vcc, 64, v30\ns_cbranch_vccnz {L("iw")}')
    A('s_waitcnt vmcnt(0)\ns_barrier')
    for kk in range(20):
        if kk and kk%8==0: A('v_add_u32 v8, 0x10000, v8\nv_add_u32 v9, 0x10000, v9')
        for T in range(2):
            for p in range(2):
                r=(kk*2+T)*4+2*p
                A(f'ds_read_b64_tr_b16 a[{r}:{r+1}], v{8+T} offset:{((kk%8)*32+4*p)*256}')
    A.srd(S_T0,36,2621440)
    A(f's_mul_i32 s{sM0}, s{sWAVE}, 10240')
    A('s_waitcnt lgkmcnt(0)\ns_barrier')
    def dma(ii): return [f's_add_u32 m0, s{sM0}, {ii*1024}', f'buffer_load_dwordx4 v{10+ii}, {T0}, s{sX} offen lds']
    def adv(): return [f's_add_u32 s{sX}, s{sX}, 81920', f's_min_u32 s{sX}, s{sX}, {2621440-40960}', f's_add_u32 s{sM0}, s{sM0}, 40960', f's_cmp_ge_u32 s{sM0}, 163840', f's_cselect_b32 s{sT}, 163840, 0', f's_sub_u32 s{sM0}, s{sM0}, s{sT}']
    for s_ in range(3):
        for ii in range(10):
            d=dma(ii); A(d[0]); A('s_nop 0'); A(d[1])
        for z in adv(): A(z)
    A(f's_mov_b32 s{sIT}, 0\ns_waitcnt vmcnt(20)')
    A(f's_cmp_eq_u32 s{sMAT}, 1\ns_cbranch_scc1 {L("v")}')
    XB=32; ACC=64; OUTR=80
    for var in ('k','v'):
        A(f'{L(var)}:')
        A(f's_barrier')
        lg=Q()
        def rd(kk,tt):
            b=XB+8*(kk%4)+4*tt
            A(f'ds_read_b128 v[{b}:{b+3}], v{20+(kk&3)} offset:{(kk>>2)*256+tt*20480}'); lg.push(f'{kk}_{tt}')
        for kk in range(3):
            for tt in range(2): rd(kk,tt)
        if flags:
            A(f's_cmp_lg_u32 s{sWAVE}, 0\ns_cbranch_scc1 {L(var+"nf")}\ns_sub_u32 s{sT}, s{sIT}, 3\ns_max_i32 s{sT}, s{sT}, 0\nv_mov_b32 v30, s{sT}\ns_mov_b64 exec, 1\nbuffer_store_dword v30, off, {WS}, s{sFL} sc1\ns_mov_b64 exec, -1\n{L(var+"nf")}:')
        side=[]
        for ii in range(10): side+=dma(ii)
        side+=adv()
        for kk in range(20):
            for n,(tt,T) in enumerate(((0,0),(0,1),(1,0),(1,1))):
                if T==0: A(f's_waitcnt lgkmcnt({lg.wait(f"{kk}_{tt}")})')
                x=f'v[{XB+8*(kk%4)+4*tt}:{XB+8*(kk%4)+4*tt+3}]'; w=f'a[{(kk*2+T)*4}:{(kk*2+T)*4+3}]'
                d=ACC+8*tt+4*T; c='0' if kk==0 else f'v[{d}:{d+3}]'
                A(f'v_mfma_f32_16x16x32_bf16 v[{d}:{d+3}], '+(f'{w}, {x}' if var=='k' else f'{x}, {w}')+f', {c}')
                if kk+3<20 and n in (0,2): rd(kk+3,n>>1)
                if n in (1,3) and side: A(side.pop(0))
        assert not side
        A(f's_add_u32 s{sIT}, s{sIT}, 1\ns_and_b32 s{sT}, s{sIT}, 3\ns_cmp_eq_u32 s{sT}, 0\ns_mov_b32 s{sT2}, 40960\ns_cselect_b32 s{sT}, {-3*40960}, s{sT2}')
        for k in range(4): A(f'v_add_u32 v{20+k}, s{sT}, v{20+k}')
        for o in range(2):
            for h in range(2):
                d=ACC+8*o+4*h if var=='k' else ACC+8*h+4*o
                cvt(A,OUTR+4*o+2*h,d,d+1); cvt(A,OUTR+4*o+2*h+1,d+2,d+3)
            A(f'buffer_store_dwordx4 v[{OUTR+4*o}:{OUTR+4*o+3}], v0, {WS}, s{sOUT} offen offset:{1024*o} sc1')
        A(f's_add_u32 s{sOUT}, s{sOUT}, s{sOSTR}\ns_cmp_lt_u32 s{sIT}, 3\ns_cbranch_scc1 {L(var+"e")}')
        A(f's_cmp_lt_u32 s{sIT}, 32\ns_waitcnt vmcnt(26)\ns_cbranch_scc1 {L(var)}\ns_branch {L("end")}')
        A(f'{L(var+"e")}:\ns_waitcnt vmcnt(22)\ns_branch {L(var)}')
    A(f'{L("end")}:\ns_waitcnt vmcnt(0)\ns_barrier')
    if flags:
        A(f's_cmp_lg_u32 s{sWAVE}, 0\ns_cbranch_scc1 {L("nf")}\nv_mov_b32 v30, 32\ns_mov_b64 exec, 1\nbuffer_store_dword v30, off, {WS}, s{sFL} sc1\ns_mov_b64 exec, -1\n{L("nf")}:')
```

```python
from common import *
sID,sWAVE=20,22
KP=4160; KW=4*KP
L_U=4*KW; UW=7680
L_P=L_U+4*UW
L_C=L_P+4*2048
def s4_code(A, sfx='s', idreg=sID):
    L=lambda n: f'L_{n}{sfx}'
    sD,sT,sT2,sK,sU,sP,sCt,sI=24,25,26,27,28,29,30,31
    vL=255
    A('s_load_dwordx16 s[36:51], s[0:1], 56\ns_load_dwordx4 s[52:55], s[0:1], 120')
    A(f's_lshl_b32 s{sD}, s{idreg}, 2\ns_add_u32 s{sD}, s{sD}, s{sWAVE}')
    A(f's_mul_i32 s{sK}, s{sWAVE}, {KW}\ns_mul_i32 s{sU}, s{sWAVE}, {UW}\ns_add_u32 s{sU}, s{sU}, {L_U}\ns_lshl_b32 s{sT}, s{sWAVE}, 11\ns_add_u32 s{sP}, s{sT}, {L_P}\ns_add_u32 s{sCt}, s{sT}, {L_C}')
    A(f'v_lshlrev_b32 v0, 2, v{vL}\nv_and_b32 v1, 31, v{vL}\nv_lshrrev_b32 v2, 5, v{vL}')
    A('s_waitcnt lgkmcnt(0)')
    A(f's_lshl_b32 s{sT}, s{sD}, 8\ns_lshl_b32 s{sT2}, s{sD}, 1')
    for k in range(6):
        A.srd(S_T0,38+2*k,163840); A(f'buffer_load_dword v{10+k}, v0, {T0}, s{sT} offen')
    A.srd(S_T0,50,1280); A(f'buffer_load_ushort v16, off, {T0}, s{sT2}')
    A.srd(S_T0,52,1280); A(f'buffer_load_ushort v17, off, {T0}, s{sT2}')
    A.srd(S_T0,36,2621440)
    A(f'v_mul_u32_u24 v3, 1280, v{vL}\ns_mul_i32 s{sT}, s{sWAVE}, {512*1280}\ns_lshl_b32 s{sT2}, s{idreg}, 3\ns_add_u32 s{sT}, s{sT}, s{sT2}')
    UR=200
    for i in range(8): A(f'buffer_load_dwordx2 v[{UR+2*i}:{UR+2*i+1}], v3, {T0}, s{sT} offen\ns_add_u32 s{sT}, s{sT}, {64*1280}')
    A.srd(S_T0,54,5242880)
    for r in range(4,8): A(f'v_mov_b32 v{r}, 0')
    A(f'v_lshlrev_b32 v8, 4, v{vL}\nv_add_u32 v9, s{sU}, v8\nds_write_b128 v9, v[4:7]\nds_write_b128 v9, v[4:7] offset:1024')
    A(f'v_lshlrev_b32 v9, 3, v{vL}\nv_add_u32 v9, s{sU}, v9\nds_write_b64 v9, v[4:5] offset:2048')
    A(f'v_lshlrev_b32 v9, 2, v1\nv_add_u32 v9, s{sK}, v9')
    for r in range(4): A(f'ds_write_b32 v9, v4 offset:{r*KP}')
    A('s_waitcnt vmcnt(8)')
    A('v_lshlrev_b32 v16, 16, v16\nv_mul_f32 v16, 0x3fb8aa3b, v16\nv_exp_f32 v16, v16\nv_lshlrev_b32 v17, 16, v17\nv_cvt_pk_bf16_f32 v16, v16, v16\nv_lshlrev_b32 v16, 16, v16')
    for m in range(2):
        for k in range(6): A(f'v_lshlrev_b32 v{20+k}, 16, v{10+k}' if m==0 else f'v_and_b32 v{20+k}, 0xffff0000, v{10+k}')
        o=28+4*m
        A(f'v_mul_f32 v20, v16, v20\nv_mul_f32 v21, v16, v21\nv_mul_f32 v22, v16, v22\nv_mul_f32 v23, v16, v23')
        A(f'v_mul_f32 v{o}, 0x3fb8aa3b, v20\nv_mul_f32 v{o+1}, 0.15915494309189535, v21')
        A(f'v_mul_f32 v{o+2}, v24, v22\nv_fma_f32 v{o+2}, -v25, v23, v{o+2}\nv_mul_f32 v{o+3}, v24, v23\nv_fmac_f32 v{o+3}, v25, v22')
    A(f'v_lshlrev_b32 v9, 5, v{vL}\nv_add_u32 v9, s{sP}, v9\nds_write_b128 v9, v[28:31]\nds_write_b128 v9, v[32:35] offset:16')
    A('v_lshlrev_b32 v10, 3, v1\nv_cvt_f32_u32 v10, v10')
    A('v_mov_b32 v11, v1\nv_mov_b32 v12, v1\nv_mov_b32 v13, 8')
    def sel(lo,l2,cb,st):
        A(l2); A(cb); A(f'v_cmp_le_u32 vcc, {lo}, v1\nv_mov_b32 v18, {st}\ns_nop 0\nv_cndmask_b32 v11, v11, v14, vcc\nv_cndmask_b32 v12, v12, v15, vcc\nv_cndmask_b32 v13, v13, v18, vcc')
    sel(8,'v_lshlrev_b32 v14, 1, v1\nv_add_u32 v14, 240, v14','v_add_u32 v15, 248, v1',4)
    sel(12,'v_bfe_u32 v19, v1, 1, 1\nv_and_b32 v20, 1, v1\nv_lshlrev_b32 v14, 8, v19\nv_lshl_add_u32 v14, v20, 2, v14\nv_add_u32 v14, 512, v14','v_lshl_add_u32 v15, v19, 6, v20\nv_add_u32 v15, 384, v15',2)
    sel(16,'v_min_u32 v19, 21, v1\nv_lshlrev_b32 v14, 8, v19\nv_add_u32 v14, -3072, v14','v_lshlrev_b32 v15, 5, v19',1)
    A('v_cvt_f32_u32 v11, v11')
    A(f'v_lshlrev_b32 v9, 6, v2\nv_add_u32 v9, s{sP}, v9')
    ACC=64; PR=40; FA=56; FB=60
    for r in range(16): A(f'v_mov_b32 v{ACC+r}, 0')
    A(f's_mov_b32 s{sI}, 0\n{L("kg")}:')
    for mm in range(4): A(f'ds_read_b128 v[{PR+4*mm}:{PR+4*mm+3}], v9 offset:{16*mm}')
    A('v_add_u32 v9, 128, v9')
    for mm in range(4):
        p=PR+4*mm
        A(f's_waitcnt lgkmcnt({3-mm})')
        A(f'v_mul_f32 v20, v{p}, v10\nv_mul_f32 v21, v{p+1}, v10\nv_mul_f32 v24, v{p}, v11\nv_mul_f32 v25, v{p+1}, v11')
        A('v_fract_f32 v21, v21\nv_fract_f32 v25, v25\nv_exp_f32 v20, v20\nv_cos_f32 v22, v21\nv_sin_f32 v23, v21\nv_exp_f32 v24, v24\nv_cos_f32 v26, v25\nv_sin_f32 v27, v25')
        A(f'v_mul_f32 v28, v22, v{p+2}\nv_mul_f32 v29, v22, v{p+3}\nv_fma_f32 v28, -v23, v{p+3}, v28\nv_fmac_f32 v29, v23, v{p+2}')
        A(f'v_mul_f32 v26, v26, v24\nv_mul_f32 v27, v27, v24\nv_mul_f32 v28, v28, v20\nv_mul_f32 v29, -v29, v20')
        cvt(A,FB+mm,26,27); cvt(A,FA+mm,28,29)
    A(f's_add_u32 s{sI}, s{sI}, 1\ns_cmp_lt_u32 s{sI}, 16')
    A(f'v_mfma_f32_32x32x16_bf16 v[{ACC}:{ACC+15}], v[{FA}:{FA+3}], v[{FB}:{FB+3}], v[{ACC}:{ACC+15}]')
    A(f's_cbranch_scc1 {L("kg")}')
    A(f's_lshl_b32 s{sT}, s{sWAVE}, 4\ns_add_u32 s{sT}, s{sT}, 32\nv_add_u32 v3, s{sT}, v2\nv_mul_u32_u24 v3, 80, v3\nv_lshl_add_u32 v3, v1, 1, v3\nv_add_u32 v3, {L_U}, v3\ns_waitcnt vmcnt(0)')
    for i in range(8):
        for ch in range(4): A(f'ds_write_b16{"_d16_hi" if ch&1 else ""} v3, v{UR+2*i+(ch>>1)} offset:{ch*UW+160*i}')
    A(f'v_lshlrev_b32 v13, 1, v13\nv_lshlrev_b32 v14, 2, v2\nv_mul_u32_u24 v14, v14, v13\nv_lshl_add_u32 v12, v12, 1, v14\nv_add_u32 v12, s{sCt}, v12\nv_mul_u32_u24 v14, 5, v13')
    for r in range(0,16,2):
        cvt(A,20,ACC+r,ACC+r+1)
        A(f'ds_write_b16 v12, v20\nv_add_u32 v12, v12, v13\nds_write_b16_d16_hi v12, v20\nv_add_u32 v12, v12, v{14 if r&2 else 13}')
    G=80
    A(f'v_lshlrev_b32 v20, 1, v{vL}\nv_add_u32 v21, s{sCt}, v20\ns_sub_u32 s{sT}, s{sCt}, {2*(0x4300-128)}\nv_cvt_f32_u32 v22, v{vL}')
    for t in range(32):
        if t<4: A(f'ds_read_u16 v{G+t}, v21 offset:{128*t}')
        else:
            A(f'v_add_f32 v23, {float(64*t)}, v22\nv_cvt_pk_bf16_f32 v23, v23, 0\nv_lshl_add_u32 v23, v23, 1, s{sT}\nds_read_u16 v{G+t}, v23')
    A(f'v_add_u32 v20, s{sK}, v20\ns_waitcnt lgkmcnt(0)')
    for t in range(32):
        if t==31: A(f'v_sub_u32 v21, 63, v{vL}')
        for r in range(4):
            if t==31 and r: A(f'v_cmp_le_u32 vcc, {r}, v21\ns_and_b64 exec, exec, vcc')
            A(f'ds_write_b16 v20, v{G+t} offset:{r*KP+64+128*t+2*r}')
    A('s_mov_b64 exec, -1')
    A(f'v_bfe_u32 v4, v{vL}, 2, 2\nv_mul_u32_u24 v4, {KP}, v4\nv_and_b32 v5, 3, v{vL}\nv_lshl_add_u32 v4, v5, 3, v4\nv_bfe_u32 v5, v{vL}, 4, 1\nv_lshl_add_u32 v4, v5, 5, v4\nv_lshlrev_b32 v5, 4, v2\nv_sub_u32 v4, v4, v5\nv_add_u32 v4, {64-40}, v4\nv_add_u32 v4, s{sK}, v4')
    A(f'v_mul_u32_u24 v6, 80, v1\nv_add_u32 v6, s{sU}, v6\nv_add_u32 v7, v6, v5\nv_add_u32 v5, {30*80}, v7\nv_lshl_add_u32 v6, v2, 3, v6')
    C0,C1=64,80; BUF=[100,132]
    for r in range(32): A(f'v_mov_b32 v{C0+r}, 0')
    A('s_waitcnt lgkmcnt(0)\ns_barrier')
    def reads(b,dm):
        o=[]
        for ks in range(2):
            for hi in range(2):
                for p in range(2): o.append(f'ds_read_b64_tr_b16 v[{b+16*ks+4*hi+2*p}:{b+16*ks+4*hi+2*p+1}], v4 offset:{40+64*dm-32*ks-8*p+2048*hi}')
                o.append(f'ds_read_b128 v[{b+16*ks+8+4*hi}:{b+16*ks+8+4*hi+3}], v5 offset:{(2-dm)*80+32*ks+2560*hi}')
        return o
    for z in reads(BUF[0],0): A(z)
    A(f's_mov_b32 s{sI}, 0\n{L("cv")}:')
    for ph in range(2):
        b=BUF[ph]; nx=reads(BUF[1-ph],ph+1)
        A('s_waitcnt lgkmcnt(0)')
        for ks in range(2):
            a0,a1,b0,b1=[b+16*ks+4*i for i in range(4)]
            for d,x,y in ((C0,a0,b0),(C1,a0,b1),(C1,a1,b0)):
                A(f'v_mfma_f32_32x32x16_bf16 v[{d}:{d+15}], v[{x}:{x+3}], v[{y}:{y+3}], v[{d}:{d+15}]')
                for _ in range(3):
                    if nx: A(nx.pop(0))
    A(f'v_add_u32 v4, 128, v4\nv_add_u32 v5, -160, v5\ns_add_u32 s{sI}, s{sI}, 1\ns_cmp_lt_u32 s{sI}, 16\ns_cbranch_scc1 {L("cv")}')
    A('s_waitcnt lgkmcnt(0)')
    E=100
    for T in range(2):
        for q in range(4): A(f'ds_read_b64 v[{E+8*T+2*q}:{E+8*T+2*q+1}], v6 offset:{2560*(T+1)+16*q}')
    A('s_nop 3\ns_waitcnt lgkmcnt(0)')
    for n in range(16):
        y=C0+2*n; u=E+n
        A(f'v_lshlrev_b32 v20, 16, v{u}\nv_and_b32 v21, 0xffff0000, v{u}\nv_mul_f32 v20, v20, v17\nv_mul_f32 v21, v21, v17')
        cvt(A,20,20,21); cvt(A,22,y,y+1)
        A(f'v_and_b32 v21, 0xffff0000, v20\nv_lshlrev_b32 v20, 16, v20\nv_and_b32 v23, 0xffff0000, v22\nv_lshlrev_b32 v22, 16, v22\nv_add_f32 v20, v20, v22\nv_add_f32 v21, v21, v23')
        cvt(A,u,20,21)
    for T in range(2):
        for q in range(4): A(f'ds_write_b64 v6, v[{E+8*T+2*q}:{E+8*T+2*q+1}] offset:{2560*(T+1)+16*q}')
    A('s_waitcnt lgkmcnt(0)\ns_barrier')
    A(f'v_mul_u32_u24 v8, 2560, v{vL}\ns_mul_i32 s{sT}, s{sWAVE}, {512*2560}\ns_lshl_b32 s{sT2}, s{idreg}, 3\ns_add_u32 s{sT}, s{sT}, s{sT2}\ns_add_u32 s{sT}, s{sT}, 1280')
    for i in range(8):
        for ch in range(4): A(f'ds_read_u16 v{E+4*i+ch}, v3 offset:{ch*UW+160*i}')
    A('s_waitcnt lgkmcnt(0)')
    for i in range(8):
        A(f'v_lshl_or_b32 v{UR+2*i}, v{E+4*i+1}, 16, v{E+4*i}\nv_lshl_or_b32 v{UR+2*i+1}, v{E+4*i+3}, 16, v{E+4*i+2}')
        A(f'buffer_store_dwordx2 v[{UR+2*i}:{UR+2*i+1}], v8, {T0}, s{sT} offen\ns_add_u32 s{sT}, s{sT}, {64*2560}')
    A('s_barrier')
```

```python
import sys
from common import *
import chain, qkv, att, s4
NAME='concat_heads__memory_aug_recurrent_mem_tr__ssm_conv_s4__prompt'
def gen(diag=False, force_fill=0, **kw):
    A=Asm()
    sTEAM,sRANK=chain.sTEAM,chain.sRANK
    if diag: A('s_memrealtime s[100:101]')
    A('s_cmp_ge_u32 s2, 256\ns_cbranch_scc1 L_end')
    A('s_load_dwordx4 s[4:7], s[0:1], 136')
    A('s_getreg_b32 s23, hwreg(HW_REG_XCC_ID)\ns_and_b32 s23, s23, 15')
    if force_fill: A(f's_add_u32 s23, s23, s2\ns_lshr_b32 s24, s2, 3\ns_add_u32 s23, s23, s24\ns_and_b32 s23, s23, 15')
    A('v_lshrrev_b32 v1, 6, v0\nv_and_b32 v255, 63, v0')
    A(f's_lshl_b32 s24, s23, 6\ns_lshl_b32 s25, s23, 2\ns_add_u32 s25, s25, {DBG_XO}\ns_cmp_lt_u32 s23, 2\ns_cselect_b32 s24, s24, s25')
    A('v_readfirstlane_b32 s22, v1\nv_mov_b32 v2, 0\ns_waitcnt lgkmcnt(0)')
    A.srd(S_WS,6,WS_SIZE); A.srd(S_DBG,4,256)
    A.c('register on the counter of the die this workgroup runs on')
    A(f's_cmp_lg_u32 s22, 0\ns_cbranch_scc1 L_reg\ns_mov_b64 exec, 1\nv_mov_b32 v3, 1\nbuffer_atomic_add v3, off, {DBG}, s24 sc0 sc1\ns_waitcnt vmcnt(0)\nds_write_b32 v2, v3\ns_mov_b64 exec, -1\ns_waitcnt lgkmcnt(0)')
    A(f'L_reg:\ns_barrier\nds_read_b32 v3, v2\ns_waitcnt lgkmcnt(0)\nv_readfirstlane_b32 s{sRANK}, v3\ns_mov_b32 s{sTEAM}, s23')
    A(f's_mov_b32 s{chain.sPOL}, 1')
    A(f's_cmp_ge_u32 s23, 2\ns_cbranch_scc1 L_other\ns_cmp_lt_u32 s{sRANK}, 32\ns_cbranch_scc1 L_chain')
    A('L_other:')
    A.c('wait until all 256 workgroups have registered, then number the remaining ones')
    A(f'v_lshlrev_b32 v4, 2, v255\nv_add_u32 v4, {DBG_XO}, v4\nv_lshlrev_b32 v5, 6, v255\nv_cmp_gt_u32 vcc, 2, v255\ns_mov_b32 s26, 0\ns_nop 0\nv_cndmask_b32 v4, v4, v5, vcc')
    A(f'L_cnt:\ns_mov_b64 exec, 0xffff\nbuffer_load_dword v5, v4, {DBG}, 0 offen sc1\ns_add_u32 s26, s26, 1\ns_cmp_gt_u32 s26, 1000000\ns_cbranch_scc1 L_end\ns_waitcnt vmcnt(0)\ns_mov_b64 exec, -1')
    A('s_mov_b32 s27, 0\ns_mov_b32 s28, 0')
    for x in range(16):
        A(f'v_readlane_b32 s29, v5, {x}\ns_add_u32 s27, s27, s29')
        if x<2: A(f's_min_u32 s{30+x}, s29, 32\ns_sub_u32 s29, s29, s{30+x}')
        A(f's_cmp_gt_u32 s23, {x}\ns_cselect_b32 s29, s29, 0\ns_add_u32 s28, s28, s29')
    A('s_cmp_ge_u32 s27, 256\ns_cbranch_scc1 L_cntok\ns_sleep 4\ns_branch L_cnt\nL_cntok:')
    A(f's_cmp_lt_u32 s23, 2\ns_cselect_b32 s29, 32, 0\ns_sub_u32 s29, s{sRANK}, s29\ns_add_u32 s28, s28, s29')
    for t in range(2):
        A(f's_add_u32 s{sRANK}, s{30+t}, s28\ns_mov_b32 s{sTEAM}, {t}\ns_cmp_lt_u32 s{sRANK}, 32\ns_cbranch_scc1 L_chain\ns_sub_u32 s28, s{sRANK}, 32')
    A('s_mov_b32 s21, s28')
    A('s_and_b32 s20, s21, 1\ns_mul_i32 s20, s20, 96\ns_lshr_b32 s23, s21, 1\ns_add_u32 s20, s20, s23\ns_barrier')
    def dg(k):
        if diag: A(f's_memrealtime s[{90+2*k}:{91+2*k}]')
    dg(0)
    qkv.qkv_code(A,flags=True)
    dg(1)
    A('s_cmp_ge_u32 s21, 160\ns_cbranch_scc1 L_nos4')
    s4.s4_code(A,idreg=21)
    A('L_nos4:')
    dg(2)
    A('s_and_b32 s23, s21, 31\ns_lshr_b32 s24, s21, 5\ns_cmp_lt_u32 s23, 20\ns_cbranch_scc1 L_out')
    A('s_mul_i32 s24, s24, 12\ns_add_u32 s20, s24, s23\ns_sub_u32 s20, s20, 20\ns_cmp_ge_u32 s20, 64\ns_cbranch_scc1 L_fin')
    att.att_code(A,flags=True,fail='L_fin')
    A('s_branch L_fin\nL_out:\ns_mul_i32 s24, s24, 20\ns_add_u32 s20, s24, s23')
    att.out_code(A,flags=True,fail='L_fin')
    A('s_branch L_fin\nL_chain:')
    dg(0)
    chain.chain_code(A,fused=True,diag=diag,**kw)
    if diag: A(f's_lshl_b32 s23, s{sTEAM}, 5\ns_add_u32 s21, s{sRANK}, s23\ns_add_u32 s21, s21, 192')
    A('L_fin:')
    if diag:
        dg(3)
        A('s_mov_b64 exec, -1\ns_waitcnt vmcnt(0) lgkmcnt(0)')
        A('v_mov_b32 v16, s100\nv_mov_b32 v17, s90\nv_mov_b32 v18, s92\nv_mov_b32 v19, s94\nv_mov_b32 v20, s96\nv_mov_b32 v21, s34\nv_mov_b32 v22, s2\nv_mov_b32 v23, s98')
        A(f's_lshl_b32 s3, s21, 2\ns_add_u32 s3, s3, s22\ns_lshl_b32 s3, s3, 5\ns_add_u32 s3, s3, {WS_DIAG}\ns_mov_b64 exec, 1')
        A(f'buffer_store_dwordx4 v[16:19], off, {WS}, s3\nbuffer_store_dwordx4 v[20:23], off, {WS}, s3 offset:16')
        if kw.get('trace'):
            A(f's_cmp_lt_u32 s21, 192\ns_cbranch_scc1 L_end\ns_mov_b64 exec, -1\ns_barrier\nds_read_b128 v[16:19], v0 offset:7168\ns_lshl_b32 s3, s21, 10\ns_add_u32 s3, s3, {WS_DIAG+0x100000}\ns_waitcnt lgkmcnt(0)\nbuffer_store_dwordx4 v[16:19], v0, {WS}, s3 offen')
    A('L_end:\ns_endpgm')
    hdr=''.join(l for l in open(f'cdna_kernels/{NAME}.s.ref') if l.startswith(';') and '@launch' not in l)
    return hdr+wrap(NAME+'_kernel',A.text(),256,256,163840,vgpr=512,accum=256)
if __name__=='__main__':
    kw=eval(sys.argv[2]) if len(sys.argv)>2 else {}
    open(sys.argv[1],'w').write(gen(**kw))
```

```python
from common import *
sID,sWAVE=20,22
TMO=1<<18
SLEEP=2
def poll(A, lab, fail, load, vreg, sneed, sT, mask=None, sleep=2):
    if mask is not None: A(f's_mov_b64 exec, {mask}')
    A(f's_mov_b32 s{sT}, 0\n{lab}:\n{load}\ns_add_u32 s{sT}, s{sT}, 1\ns_cmp_gt_u32 s{sT}, {TMO}\ns_cbranch_scc1 {fail}\ns_waitcnt vmcnt(0)\nv_cmp_gt_i32 vcc, s{sneed}, v{vreg}\ns_cbranch_vccz {lab}_ok\ns_sleep {sleep}\ns_branch {lab}\n{lab}_ok:')
    if mask is not None: A('s_mov_b64 exec, -1')

def att_code(A, flags=False, sfx='a', idreg=sID, fail='L_end'):
    L=lambda n: f'L_{n}{sfx}'
    sH,sSEG,sT,sT2,sKV,sQ,sM,sO,sO2,sC,sN,sFO=24,25,26,27,28,29,30,31,32,33,34,35
    sMK=36
    vL=255
    Qr,Kr,Vr,Xr,VM,S,PM,P,O=16,48,80,112,128,136,156,180,188
    A(f's_and_b32 s{sH}, s{idreg}, 7\ns_lshl_b32 s{sH}, s{sH}, 2\ns_add_u32 s{sH}, s{sH}, s{sWAVE}\ns_lshr_b32 s{sSEG}, s{idreg}, 3')
    A(f'v_lshlrev_b32 v0, 4, v{vL}\nv_lshlrev_b32 v1, 3, v{vL}\nv_and_b32 v2, 15, v{vL}\nv_lshrrev_b32 v3, 4, v{vL}\nv_lshlrev_b32 v3, 2, v3')
    for r in range(4): A(f'v_add_u32 v4, {r}, v3\nv_cmp_le_u32 s[{sMK+2*r}:{sMK+2*r+1}], v4, v2')
    A(f'v_mov_b32 v5, {hex(0xd028965f)}')
    A(f's_mov_b32 s{sC}, {hex(0x3e0293ee)}')
    for r in range(PM,PM+24): A(f'v_mov_b32 v{r}, 0')
    A(f'v_mov_b32 v{P+2}, 0\nv_mov_b32 v{P+3}, 0')
    A(f's_lshl_b32 s{sFO}, s{sSEG}, 7\ns_lshl_b32 s{sT}, s{sH}, 2\ns_add_u32 s{sFO}, s{sFO}, s{sT}\ns_add_u32 s{sFO}, s{sFO}, {FL_O}')
    if flags:
        A(f's_and_b32 s{sT}, s{sSEG}, 1\ns_mul_i32 s{sT2}, s{sT}, 96\ns_add_u32 s{sT2}, s{sT2}, s{sH}\nv_lshl_add_u32 v6, v{vL}, 5, s{sT2}\nv_lshlrev_b32 v6, 7, v6\nv_add_u32 v6, {FL_QKV}, v6')
        A(f's_lshl_b32 s{sT}, s{sT}, 5\ns_add_u32 s{sT}, s{sT}, s{sH}\ns_lshl_b32 s{sT}, s{sT}, 7\ns_add_u32 s44, s{sT}, {FL_KVM}')
    A(f'{L("loop")}:')
    A(f's_mul_i32 s{sKV}, s{sSEG}, {SEGB}\ns_lshl_b32 s{sT}, s{sH}, 14\ns_add_u32 s{sKV}, s{sKV}, s{sT}')
    A(f's_lshl_b32 s{sT}, s{sSEG}, 5\ns_add_u32 s{sT}, s{sT}, s{sH}\ns_lshl_b32 s{sQ}, s{sT}, 13\ns_add_u32 s{sQ}, s{sQ}, {WS_Q}\ns_mul_i32 s{sM}, s{sT}, 6144\ns_add_u32 s{sM}, s{sM}, {WS_KVM}')
    A(f's_lshl_b32 s{sO}, s{sSEG}, 18\ns_lshl_b32 s{sT}, s{sH}, 12\ns_add_u32 s{sO}, s{sO}, s{sT}\ns_add_u32 s{sO}, s{sO}, {WS_O}\ns_add_u32 s{sO2}, s{sO}, 0x20000')
    if flags:
        A(f's_lshr_b32 s{sN}, s{sSEG}, 1\ns_add_u32 s{sN}, s{sN}, 1')
        poll(A,L('pq'),fail,f'buffer_load_dword v7, v6, {WS}, 0 offen sc1',7,sN,sT,mask=7)
    for kk in range(4):
        for t in range(2): A(f'buffer_load_dwordx4 v[{Qr+8*kk+4*t}:{Qr+8*kk+4*t+3}], v0, {WS}, s{sQ} offen offset:{(kk&1)*2048+1024*t} sc1')
        if kk==1: A(f's_add_u32 s{sQ}, s{sQ}, 4096')
    for kk in range(4):
        for t in range(2): A(f'buffer_load_dwordx4 v[{Kr+8*kk+4*t}:{Kr+8*kk+4*t+3}], v0, {WS}, s{sKV} offen offset:{1024*t} sc1')
        for t in range(2): A(f'buffer_load_dwordx4 v[{Vr+8*kk+4*t}:{Vr+8*kk+4*t+3}], v0, {WS}, s{sKV} offen offset:{2048+1024*t} sc1')
        A(f's_add_u32 s{sKV}, s{sKV}, 4096')
    if flags:
        A(f's_add_u32 s{sN}, s{sSEG}, 1')
        poll(A,L('pm'),fail,f'buffer_load_dword v7, off, {WS}, s44 sc1',7,sN,sT,mask=1)
    for kk in range(4):
        A(f'buffer_load_dwordx4 v[{Xr+4*kk}:{Xr+4*kk+3}], v0, {WS}, s{sM} offen offset:{(kk&1)*1536} sc1')
        A(f'buffer_load_dwordx2 v[{VM+2*kk}:{VM+2*kk+1}], v1, {WS}, s{sM} offen offset:{(kk&1)*1536+1024} sc1')
        if kk==1: A(f's_add_u32 s{sM}, s{sM}, 3072')
    T0_=[S,S+4]; T1_=[S+8,S+12]; T2_=S+16
    def mf(d,a,b,first): A(f'v_mfma_f32_16x16x32_bf16 v[{d}:{d+3}], v[{a}:{a+3}], v[{b}:{b+3}], '+('0' if first else f'v[{d}:{d+3}]'))
    A('s_waitcnt vmcnt(8)')
    for kk in range(4):
        mf(T1_[0],Kr+8*kk,Qr+8*kk,kk==0); mf(T1_[1],Kr+8*kk,Qr+8*kk+4,kk==0); mf(T2_,Kr+8*kk+4,Qr+8*kk+4,kk==0)
    for kk in range(4):
        A(f's_waitcnt vmcnt({7-2*kk})')
        mf(T0_[0],Xr+4*kk,Qr+8*kk,kk==0); mf(T0_[1],Xr+4*kk,Qr+8*kk+4,kk==0)
    for d in (T1_[0],T2_):
        for r in range(4): A(f'v_cndmask_b32 v{d+r}, v5, v{d+r}, s[{sMK+2*r}:{sMK+2*r+1}]')
    vals=[[T0_[0],T0_[0]+1]+list(range(T1_[0],T1_[0]+4)), [T0_[1],T0_[1]+1]+list(range(T1_[1],T1_[1]+4))+list(range(T2_,T2_+4))]
    m=[8,10]
    def xred(op):
        for sw in ('16','32'):
            for q in range(2): A(f'v_mov_b32 v{m[q]+1}, v{m[q]}')
            A('s_nop 0')
            for q in range(2): A(f'v_permlane{sw}_swap_b32 v{m[q]}, v{m[q]+1}')
            for q in range(2): A(f'{op} v{m[q]}, v{m[q]}, v{m[q]+1}')
    for q in range(2):
        x=vals[q]; A(f'v_max_f32 v{m[q]}, v{x[0]}, v{x[1]}')
        for i in range(2,len(x),2): A(f'v_max3_f32 v{m[q]}, v{m[q]}, v{x[i]}, v{x[i+1]}')
    xred('v_max_f32')
    for q in range(2): A(f'v_mul_f32 v{m[q]}, s{sC}, v{m[q]}')
    for q in range(2):
        for x in vals[q]: A(f'v_fma_f32 v{x}, v{x}, s{sC}, -v{m[q]}')
    for q in range(2):
        for x in vals[q]: A(f'v_exp_f32 v{x}, v{x}')
    for q in range(2):
        x=vals[q]; A(f'v_add_f32 v{m[q]}, v{x[0]}, v{x[1]}')
        for y in x[2:]: A(f'v_add_f32 v{m[q]}, v{m[q]}, v{y}')
    xred('v_add_f32')
    for q in range(2): A(f'v_rcp_f32 v{m[q]}, v{m[q]}')
    for q in range(2):
        x=vals[q]
        for i in range(0,len(x),2): A(f'v_pk_mul_f32 v[{x[i]}:{x[i]+1}], v[{x[i]}:{x[i]+1}], v[{m[q]}:{m[q]+1}] op_sel_hi:[1,0]')
    for q in range(2):
        x=vals[q]
        for i in range(2,len(x),2): cvt(A,P+4*q+i//2-1,x[i],x[i+1])
        cvt(A,PM+12*q+2,x[0],x[1]); cvt(A,PM+12*q+9,x[0],x[1])
    A('s_waitcnt vmcnt(0)\ns_nop 0')
    win={0:2,1:8,2:0,3:6}
    for q in range(2):
        for et in range(8): mf(O+32*q+4*et,Vr+4*et,P+4*q,True)
        for et in range(8): mf(O+32*q+4*et,VM+4*(et>>2),PM+12*q+win[et&3],False)
    for q in range(2):
        for mm in range(4):
            d=O+32*q+8*mm; o=Qr+16*q+4*mm
            if q==1 and mm==0: A('s_nop 0')
            for h in range(4): cvt(A,o+h,d+2*h,d+2*h+1)
            A(f'buffer_store_dwordx4 v[{o}:{o+3}], v0, {WS}, s{sO2 if q else sO} offen offset:{1024*mm} sc1')
    A(f's_add_u32 s{sSEG}, s{sSEG}, 8\ns_lshr_b32 s{sT}, s{sSEG}, 3\nv_mov_b32 v7, s{sT}\ns_waitcnt vmcnt(0)')
    if flags: A(f's_mov_b64 exec, 1\nbuffer_store_dword v7, off, {WS}, s{sFO} sc1\ns_mov_b64 exec, -1')
    A(f's_cmp_lt_u32 s{sSEG}, 64\ns_cbranch_scc1 {L("loop")}')

def out_code(A, flags=False, sfx='o', idreg=sID, nset=6, fail='L_end'):
    L=lambda n: f'L_{n}{sfx}'
    sCG,sU,sT,sT2,sM0,sO,sR,sN,sPAR=24,25,26,27,28,29,30,31,32
    vL=255
    A(f's_mul_i32 s{sU}, s{idreg}, 205\ns_lshr_b32 s{sU}, s{sU}, 12\ns_mul_i32 s{sT}, s{sU}, 20\ns_sub_u32 s{sCG}, s{idreg}, s{sT}')
    A('s_load_dwordx2 s[36:37], s[0:1], 40\ns_load_dwordx2 s[38:39], s[0:1], 128\ns_waitcnt lgkmcnt(0)')
    A.srd(S_T0,36,5242880)
    A(f'v_lshrrev_b32 v1, 2, v{vL}\nv_and_b32 v2, 3, v{vL}\nv_mul_u32_u24 v3, 1280, v1\nv_lshl_add_u32 v3, v2, 4, v3')
    A(f's_mul_i32 s{sT}, s{sWAVE}, {1024*1280}\ns_lshl_b32 s{sT2}, s{sCG}, 6\ns_add_u32 s{sT}, s{sT}, s{sT2}')
    A(f's_lshl_b32 s{sT2}, s{sWAVE}, 15\nv_lshlrev_b32 v4, 4, v{vL}\nv_add_u32 v4, s{sT2}, v4')
    for rnd in range(2):
        A(f's_lshl_b32 s{sM0}, s{sWAVE}, 15')
        for i in range(32):
            A(f's_mov_b32 m0, s{sM0}\ns_add_u32 s{sM0}, s{sM0}, 1024\nbuffer_load_dwordx4 v3, {T0}, s{sT} offen lds\ns_add_u32 s{sT}, s{sT}, {16*1280}')
        for k in range(16):
            A(f's_waitcnt vmcnt({30-2*k})')
            for T in range(2):
                for p in range(2):
                    r=((rnd*16+k)*2+T)*4+2*p
                    A(f'ds_read_b64_tr_b16 a[{r}:{r+1}], v4 offset:{k*2048+p*1024+8*T}')
        A('s_waitcnt lgkmcnt(0)')
    A.srd(S_T0,38,5242880)
    A(f'v_lshlrev_b32 v0, 4, v{vL}\nv_and_b32 v1, 15, v{vL}\nv_lshrrev_b32 v2, 4, v{vL}\nv_mul_u32_u24 v1, 2560, v1\nv_lshl_add_u32 v1, v2, 4, v1')
    A(f's_lshl_b32 s{sT}, s{sWAVE}, 11\nv_add_u32 v2, s{sT}, v0\ns_mov_b32 s{sPAR}, 0')
    A(f's_lshl_b32 s{sT}, s{sWAVE}, 5\nv_lshl_add_u32 v5, v{vL}, 2, s{sT}')
    A('s_barrier')
    B=16; ACC=144
    A(f'{L("loop")}:')
    A(f's_lshl_b32 s{sO}, s{sU}, 17\ns_lshl_b32 s{sT}, s{sWAVE}, 15\ns_add_u32 s{sO}, s{sO}, s{sT}\ns_add_u32 s{sO}, s{sO}, {WS_O}')
    if flags:
        A(f's_lshr_b32 s{sN}, s{sU}, 2\ns_add_u32 s{sN}, s{sN}, 1\ns_bfe_u32 s{sT2}, s{sU}, 0x10001\ns_lshl_b32 s{sT2}, s{sT2}, 7\ns_add_u32 s{sT2}, s{sT2}, {FL_O}')
        poll(A,L('p'),fail,f'buffer_load_dword v7, v5, {WS}, s{sT2} offen sc1',7,sN,sT,mask=255)
    for k in range(32):
        A(f'buffer_load_dwordx4 v[{B+4*k}:{B+4*k+3}], v0, {WS}, s{sO} offen offset:{(k&3)*1024} sc1')
        if k&3==3: A(f's_add_u32 s{sO}, s{sO}, 4096')
    for k in range(32):
        A(f's_waitcnt vmcnt({31-k})')
        for T in range(2):
            d=ACC+4*T
            A(f'v_mfma_f32_16x16x32_bf16 v[{d}:{d+3}], a[{(k*2+T)*4}:{(k*2+T)*4+3}], v[{B+4*k}:{B+4*k+3}], '+('0' if k==0 else f'v[{d}:{d+3}]'))
    A(f'v_add_u32 v3, s{sPAR}, v2\nv_add_u32 v4, s{sPAR}, v0\ns_xor_b32 s{sPAR}, s{sPAR}, 8192')
    A(f's_mul_i32 s{sR}, s{sU}, {16*2560}\ns_lshl_b32 s{sT}, s{sCG}, 6\ns_add_u32 s{sR}, s{sR}, s{sT}\ns_add_u32 s{sU}, s{sU}, {nset}')
    A(f's_cmp_eq_u32 s{sWAVE}, 0\ns_cbranch_scc1 {L("red")}')
    A(f'ds_write_b128 v3, v[{ACC}:{ACC+3}]\nds_write_b128 v3, v[{ACC+4}:{ACC+7}] offset:1024\ns_waitcnt lgkmcnt(0)\ns_barrier\ns_branch {L("nx")}')
    A(f'{L("red")}:\ns_barrier')
    for w in range(1,4):
        for T in range(2): A(f'ds_read_b128 v[{B+8*w+4*T}:{B+8*w+4*T+3}], v4 offset:{2048*w+1024*T}')
    A('s_waitcnt lgkmcnt(0)')
    for w in range(1,4):
        for i in range(0,8,2): A(f'v_pk_add_f32 v[{ACC+i}:{ACC+i+1}], v[{ACC+i}:{ACC+i+1}], v[{B+8*w+i}:{B+8*w+i+1}]')
    for i in range(4): cvt(A,ACC+8+i,ACC+2*i,ACC+2*i+1)
    A(f'buffer_store_dwordx4 v[{ACC+8}:{ACC+11}], v1, {T0}, s{sR} offen')
    A(f'{L("nx")}:\ns_cmp_lt_u32 s{sU}, 128\ns_cbranch_scc1 {L("loop")}')
```

```python
from asmlib import *
from layout import *

class Q:
    def __init__(s): s.q=[]
    def push(s,name): s.q.append(name)
    def wait(s,name):
        i=max(k for k,n in enumerate(s.q) if n==name)
        n=len(s.q)-1-i
        s.q=s.q[i+1:]
        return n
    def has(s,name): return name in s.q

S_WS=8
S_T0=12
S_DBG=16
sTEAM,sRANK,sWAVE=20,21,22
sAGL,sAGL4,sAGR,sAGR4,sPUBR,sRING,sRINGB,sKV,sTOUCH,sINB,sSTEP,sTMO=23,24,25,26,27,28,29,30,31,32,33,34
sRINGX,sRED,sC,sT,sT2,sT3,sINBX=35,36,37,38,39,40,41
sM3,sMC=42,44
sPOL=46; sRDY=47; sW4=48; sFLG=49; sFB=84; sFV=86
COPY2=0x400000
CTMO=400000
vL16,vIDX,vRSA,vRSC,vPUB,vTCH,vSW,vPUBR,vOW,vWB,vID=0,1,2,3,4,5,6,7,8,9,10
vT0,vT1,vT2,vT3=12,13,14,15
vA=16; vACC=36; vST=60; vKX=84; vVX=92; vSEL=100; vW=104
LDS_S=0; LDS_T0=4096; LDS_O=5120; LDS_W=8192; LDS_WW=38*1024
LDS_UNITS=[('v',0),('v',1),('v',2),('v',3),('v',4),('q',1),('q',5),('q',7),('q',9)]
HALF=('q',6)
def unit_regs():
    m={}; pool=[('a',i*8) for i in range(32)]+[('v',vW+i*8) for i in range(19)]
    it=iter(pool)
    for kind,n in (('q',10),('k',10),('v',10),('o',5)):
        for f in range(n):
            for t in range(2):
                if (kind,f) in LDS_UNITS or ((kind,f)==HALF and t==0): continue
                m[(kind,f,t)]=next(it)
    assert next(it,None) is None
    return m
UR=unit_regs()
def R(x,n,off=0): return f'{x[0]}[{x[1]+off}:{x[1]+off+n-1}]'
PERM=[2,3,0,1,4]
AREG={0:vA+16,1:vKX,2:vKX+4,3:vVX,4:vVX+4,5:vA,6:vA+4,7:vA+8,8:vA+12,9:vA+16}

def chain_code(A, fused=False, stamps=0, nsteps=63, depth=4, polfix=None, diag=False, copies=1, **kw):
    L=lambda n: f'L_{n}'
    ws=f's[{S_WS}:{S_WS+3}]'
    A('v_and_b32 v20, 63, v0\nv_lshrrev_b32 v21, 6, v0\ns_nop 0')
    A(f'v_readfirstlane_b32 s{sWAVE}, v21')
    A(f'v_lshlrev_b32 v{vL16}, 4, v20')
    A('v_and_b32 v22, 15, v20\nv_lshrrev_b32 v23, 4, v20')
    A(f's_mov_b32 s{sM3}, 0x33333333\ns_mov_b32 s{sM3+1}, 0x33333333\ns_mov_b32 s{sMC}, 0xcccccccc\ns_mov_b32 s{sMC+1}, 0xcccccccc')
    A(f'v_mov_b32 v{vIDX}, 0x4444\nv_mov_b32 v24, 0xeeee\nv_cndmask_b32 v{vIDX}, v{vIDX}, v24, s[{sMC}:{sMC+1}]')
    A(f's_lshl_b32 s{sT}, s{sRANK}, 6')
    A(f'v_lshrrev_b32 v24, 3, v20\nv_lshl_add_u32 v24, v21, 3, v24\nv_lshlrev_b32 v24, 11, v24\nv_and_b32 v25, 7, v20\nv_lshl_add_u32 v24, v25, 3, v24\nv_add_u32 v{vRSA}, s{sT}, v24')
    A(f'v_lshl_add_u32 v24, v21, 2, v23\nv_add_u32 v24, 64, v24\nv_lshlrev_b32 v24, 11, v24\nv_lshl_add_u32 v24, v22, 2, v24\nv_add_u32 v{vRSC}, s{sT}, v24')
    A(f's_lshl_b32 s{sT}, s{sWAVE}, 5\ns_add_u32 s{sT}, s{sT}, s{sRANK}')
    A(f's_cmp_lt_u32 s{sT}, 80\ns_cselect_b32 s{sRED}, 1, 0\ns_cselect_b32 s{sT}, s{sT}, 0\ns_lshl_b32 s{sINB}, s{sT}, 11')
    A('v_and_b32 v26, 3, v22\nv_lshrrev_b32 v27, 1, v23\nv_and_b32 v29, 1, v23')
    A(f's_cmp_lt_u32 s{sWAVE}, 2\ns_cbranch_scc0 {L("segC")}')
    A(f's_lshr_b32 s50, s{sRANK}, 3\ns_lshr_b32 s51, s{sRANK}, 1\ns_and_b32 s51, s51, 3\ns_and_b32 s55, s{sRANK}, 1\ns_and_b32 s52, s50, 1\ns_lshl_b32 s52, s52, 1\ns_add_u32 s52, s52, s55')
    A(f's_lshr_b32 s53, s50, 1\ns_lshl_b32 s56, s{sWAVE}, 1\ns_add_u32 s53, s53, s56')
    A(f's_lshl_b32 s54, s{sWAVE}, 7\ns_lshl_b32 s56, s50, 5\ns_add_u32 s54, s54, s56\ns_lshl_b32 s56, s55, 3\ns_add_u32 s54, s54, s56')
    A('v_lshl_add_u32 v28, v29, 3, v26\nv_lshlrev_b32 v28, 1, v28')
    A('v_lshl_add_u32 v24, v29, 1, v27\nv_lshlrev_b32 v24, 4, v24\nv_lshl_add_u32 v24, v26, 2, v24')
    A('v_and_b32 v30, 1, v22\nv_bfe_u32 v31, v22, 2, 1\nv_lshl_add_u32 v30, v30, 1, v31')
    A(f's_branch {L("segD")}\n{L("segC")}:')
    A(f's_lshr_b32 s50, s{sRANK}, 2\ns_and_b32 s50, s50, 3\ns_and_b32 s51, s{sRANK}, 3\ns_mov_b32 s52, s50\ns_mov_b32 s53, 4\ns_lshl_b32 s54, s50, 4\ns_add_u32 s54, s54, 256')
    A('v_lshl_add_u32 v28, v26, 1, v29\nv_lshlrev_b32 v28, 1, v28')
    A('v_lshrrev_b32 v24, 1, v26\nv_lshl_add_u32 v24, v24, 1, v27\nv_lshlrev_b32 v24, 4, v24\nv_and_b32 v25, 1, v26\nv_lshl_add_u32 v24, v25, 3, v24\nv_lshl_add_u32 v24, v29, 2, v24')
    A('v_and_b32 v30, 1, v22\nv_bfe_u32 v31, v22, 2, 1\nv_lshl_add_u32 v30, v31, 1, v30')
    A(f'{L("segD")}:')
    A(f's_lshl_b32 s53, s53, 10\ns_lshl_b32 s52, s52, 8\ns_add_u32 s53, s53, s52\ns_lshl_b32 s56, s51, 6\ns_add_u32 s53, s53, s56')
    A(f'v_add_u32 v24, s53, v24\nv_cmp_gt_u32 vcc, 4, v22\nv_mov_b32 v25, {hex(OOB)}\nv_add_u32 v31, {COPY2}, v24\nv_cndmask_b32 v{vPUB}, v25, v24, vcc\nv_cndmask_b32 v31, v31, v24, vcc')
    A(f'v_cmp_gt_u32 vcc, {8 if copies>1 else 4}, v22\ns_nop 1\nv_cndmask_b32 v{vPUBR}, v25, v31, vcc')
    A(f's_mul_i32 s56, s{sTEAM}, 320\ns_add_u32 s54, s54, s56\ns_mul_i32 s56, s51, 1280\ns_add_u32 s54, s54, s56')
    A('v_mul_u32_u24 v24, 640, v27\nv_add3_u32 v28, v24, v28, s54\nv_lshlrev_b32 v28, 1, v28')
    A(f's_lshl_b32 s{sT2}, s{sRANK}, 14\ns_lshl_b32 s{sT3}, s{sWAVE}, 12\ns_add_u32 s{sKV}, s{sT2}, s{sT3}')
    A(f'v_lshlrev_b32 v24, 7, v20\nv_add_u32 v26, s{sKV}, v24')
    A(f's_lshl_b32 s{sT2}, s{sTEAM}, 13\ns_add_u32 s{sAGL}, s{sT2}, {AGL_OFF}\ns_mul_i32 s{sT3}, s{sWAVE}, 1280\ns_add_u32 s{sT2}, s{sAGL}, s{sT3}\ns_sub_u32 s{sT2}, s{sT2}, 4096')
    A(f'v_add_u32 v24, s{sT2}, v24\nv_cmp_gt_u32 vcc, 32, v20\ns_nop 1\nv_cndmask_b32 v24, v24, v26, vcc\nv_cmp_gt_u32 vcc, 42, v20\ns_nop 1\nv_cndmask_b32 v{vTCH}, v25, v24, vcc')
    A(f'v_lshl_add_u32 v{vSW}, v21, 10, v{vL16}\ns_lshl_b32 s{sW4}, s{sWAVE}, 2')
    A(f'v_lshrrev_b32 v24, 1, v21\nv_lshlrev_b32 v24, 10, v24\nv_and_b32 v25, 1, v21\nv_lshl_add_u32 v24, v25, 5, v24\nv_add_u32 v24, {LDS_O}, v24\nv_add_u32 v{vOW}, v24, v{vL16}')
    A(f's_mul_i32 s57, s{sWAVE}, {LDS_WW}\ns_add_u32 s57, s57, {LDS_W}\nv_add_u32 v{vWB}, s57, v{vL16}')
    A('v_lshrrev_b32 v24, 3, v22\nv_lshlrev_b32 v24, 4, v24\nv_mov_b32 v25, 0x3f80\nv_lshlrev_b32 v24, v24, v25\nv_and_b32 v26, 2, v22\nv_lshl_add_u32 v26, v26, 2, v30')
    for dw in range(4): A(f'v_cmp_eq_u32 vcc, {dw}, v26\ns_nop 1\nv_cndmask_b32 v{vSEL+dw}, 0, v24, vcc')
    A('v_and_b32 v24, 1, v22\nv_lshlrev_b32 v24, 4, v24\nv_lshlrev_b32 v24, v24, v25\nv_lshrrev_b32 v26, 1, v22\nv_lshlrev_b32 v27, 1, v23\nv_sub_u32 v26, v26, v27')
    for x in range(2): A(f'v_cmp_eq_u32 vcc, {x}, v26\ns_nop 1\nv_cndmask_b32 v{vID+x}, 0, v24, vcc')
    A('v_and_b32 v24, 1, v23\nv_lshrrev_b32 v25, 1, v23\nv_lshlrev_b32 v26, 1, v23\nv_xor_b32 v26, v26, v22')
    A('v_lshrrev_b32 v29, 1, v21\nv_and_b32 v30, 1, v21')
    A('v_lshl_add_u32 v31, v25, 4, v24\nv_lshl_add_u32 v31, v29, 5, v31\nv_lshl_add_u32 v31, v30, 3, v31\nv_lshlrev_b32 v31, 13, v31')
    A('v_lshl_add_u32 v32, v25, 3, v24\nv_lshl_add_u32 v32, v21, 4, v32\nv_lshlrev_b32 v32, 13, v32')
    A('v_lshl_add_u32 v33, v25, 5, v24\nv_lshl_add_u32 v33, v21, 2, v33\nv_mul_u32_u24 v33, 1280, v33')
    for var in range(2):
        if var: A('v_xor_b32 v26, 8, v26')
        A(f'v_lshl_add_u32 v{60+var}, v26, 4, v31\nv_lshl_add_u32 v{62+var}, v26, 4, v32\nv_lshl_add_u32 v{64+var}, v26, 4, v33')
        A(f'v_bfe_u32 v27, v26, 1, 1\nv_mul_u32_u24 v27, {64*1280}, v27\nv_add_u32 v27, v27, v33\nv_lshrrev_b32 v34, 2, v26\nv_lshl_add_u32 v27, v34, 5, v27\nv_and_b32 v34, 1, v26\nv_lshl_add_u32 v{66+var}, v34, 4, v27')
    A('v_bfe_u32 v26, v20, 2, 2\nv_lshl_add_u32 v27, v24, 2, v26\nv_lshlrev_b32 v27, 1, v27\nv_bfe_u32 v29, v20, 1, 1\nv_lshl_add_u32 v29, v21, 2, v29\nv_xor_b32 v29, v29, v27\nv_lshlrev_b32 v29, 4, v29')
    A(f'v_lshl_add_u32 v26, v24, 3, v26\nv_lshl_add_u32 v29, v26, 8, v29\nv_and_b32 v26, 1, v20\nv_lshl_add_u32 v29, v26, 3, v29\nv_mul_u32_u24 v26, {LDS_WW}, v25\nv_add_u32 v26, {LDS_W}, v26')
    A(f'v_add_u32 v68, v29, v26\nv_xor_b32 v29, 32, v29\nv_add_u32 v69, v29, v26\nv_add_u32 v70, {2*LDS_WW}, v68\nv_add_u32 v71, {2*LDS_WW}, v69')
    A('s_load_dwordx2 s[58:59], s[0:1], 8\ns_load_dwordx8 s[60:67], s[0:1], 16')
    A(f's_lshl_b32 s68, s{sRANK}, 8\ns_mul_i32 s{sT2}, s{sTEAM}, {320*8192}\ns_add_u32 s69, s68, s{sT2}\ns_sub_u32 s70, s68, s{sT2}\ns_add_u32 s70, s70, {320*8192}')
    A(f's_mul_i32 s71, s{sRANK}, {128*1280}\ns_mul_i32 s{sT2}, s{sTEAM}, 640\ns_add_u32 s71, s71, s{sT2}')
    A('s_waitcnt lgkmcnt(0)')
    allu=[(k,f) for k,n in (('q',10),('k',10),('v',10),('o',5)) for f in range(n)]
    units=[u for u in allu if u not in LDS_UNITS]+sorted(LDS_UNITS)
    NS=9; pq=Q(); cur=[None]
    def setsrd(kind):
        if cur[0]!=kind:
            cur[0]=kind
            A.srd(S_T0,{'q':60,'k':62,'v':64,'o':66,'m':58}[kind],10240 if kind=='m' else 5242880)
    def issue(i):
        kind,f=units[i]; setsrd(kind)
        sl=i%NS
        for io in range(4):
            if kind!='o':
                base='s69' if f<5 else 's70'
                isC=(f%5==4)
                off_=(64*PERM[f%5]+2*io)*8192; vo=62 if isC else 60
            else:
                base='s71'; e=16*(io>>1)+2*(io&1)
                if f<4: off_=(64*(f&1)+e)*1280+256*(f>>1); vo=64
                else: off_=e*1280+512; vo=66
            A(f's_add_u32 m0, s57, {sl*4096+io*1024}\ns_add_u32 s{sT2}, {base}, {off_}')
            A(f'buffer_load_dwordx4 v{vo+(io>>1)}, s[{S_T0}:{S_T0+3}], s{sT2} offen lds'); pq.push(f'u{i}')
    for i in range(depth): issue(i)
    A(f's_add_u32 s{sAGL4}, s{sAGL}, 4096')
    A(f's_lshl_b32 s{sT2}, s{sTEAM}, 20\ns_add_u32 s{sPUBR}, s{sT2}, {WS_AGR}')
    A(f's_mul_i32 s{sT2}, s{sTEAM}, {2*RING_SLOT}\ns_add_u32 s{sRING}, s{sT2}, {WS_RING}\ns_add_u32 s{sT3}, s{sRING}, {RING_SLOT}\ns_xor_b32 s{sRINGX}, s{sRING}, s{sT3}')
    A(f's_add_u32 s{sT2}, s{sINB}, s{sRING}\ns_add_u32 s{sINB}, s{sINB}, s{sT3}\ns_xor_b32 s{sINBX}, s{sINB}, s{sT2}')
    A(f's_mov_b32 s{sTOUCH}, {SEGB}\ns_mov_b32 s{sSTEP}, 0\ns_mov_b32 s{sTMO}, 0\ns_mov_b32 s{sRDY}, 0')
    A(f's_mov_b32 s{sC}, {hex(0x3e0293ee)}')
    A(f's_lshl_b32 s{sT2}, s{sTEAM}, 5\ns_add_u32 s{sT}, s{sT2}, s{sRANK}\ns_lshl_b32 s{sFLG}, s{sT}, 7\ns_add_u32 s{sFLG}, s{sFLG}, {FL_KVM}')
    def st(x): A(x); pq.push('arm')
    for r in range(36,40): A(f'v_mov_b32 v{r}, -1')
    A(f's_lshl_b32 s{sT2}, s{sRANK}, 15\ns_add_u32 s{sT2}, s{sT2}, s{sPUBR}\ns_lshl_b32 s{sT3}, s{sWAVE}, 13\ns_add_u32 s{sT3}, s{sT3}, s{sT2}')
    for k in range(4): st(f'buffer_store_dwordx4 v[36:39], v{vL16}, {ws}, s{sT3} offen offset:{1024*k} sc1')
    A(f's_add_u32 s{sT3}, s{sT3}, 4096'); st(f'buffer_store_dwordx4 v[36:39], v{vL16}, {ws}, s{sT3} offen sc1')
    if copies>1:
        A(f's_add_u32 s{sT3}, s{sT3}, {COPY2}'); st(f'buffer_store_dwordx4 v[36:39], v{vL16}, {ws}, s{sT3} offen sc1'); A(f's_sub_u32 s{sT3}, s{sT3}, 4096')
        for k in range(4): st(f'buffer_store_dwordx4 v[36:39], v{vL16}, {ws}, s{sT3} offen offset:{1024*k} sc1')
    A(f's_mul_i32 s{sT2}, s{sRANK}, {2*SEGB}\ns_add_u32 s{sT2}, s{sT2}, s{sAGL}\ns_lshl_b32 s{sT3}, s{sWAVE}, 10\ns_add_u32 s{sT3}, s{sT3}, s{sT2}')
    st(f'buffer_store_dwordx4 v[36:39], v{vL16}, {ws}, s{sT3} offen sc1'); A(f's_add_u32 s{sT3}, s{sT3}, {SEGB}'); st(f'buffer_store_dwordx4 v[36:39], v{vL16}, {ws}, s{sT3} offen sc1')
    A(f's_and_b32 s{sT3}, s{sWAVE}, 1\ns_mul_i32 s{sT3}, s{sT3}, {SEGB}\ns_add_u32 s{sT3}, s{sT3}, s{sT2}\ns_add_u32 s{sT3}, s{sT3}, 4096'); st(f'buffer_store_dwordx4 v[36:39], v{vL16}, {ws}, s{sT3} offen sc1')
    A(f's_xor_b32 s{sT3}, s{sINB}, s{sINBX}')
    for base in (sINB,sT3):
        for j in range(2): st(f'buffer_store_dwordx4 v[36:39], v{vL16}, {ws}, s{base} offen offset:{1024*j} sc1')
    if fused:
        A(f's_lshl_b32 s{sT}, s{sT}, 2\ns_add_u32 s{sT}, s{sT}, s{sWAVE}\ns_lshl_b32 s{sT}, s{sT}, 8\ns_add_u32 s{sT}, s{sT}, {WS_FLAG}\nv_mov_b32 v24, 0\nv_lshlrev_b32 v25, 2, v20')
        st(f'buffer_store_dword v24, v25, {ws}, s{sT} offen sc1')
    setsrd('m')
    st(f'buffer_load_dword v35, v28, s[{S_T0}:{S_T0+3}], 0 offen')
    lds={}; pend=[]
    for i,(kind,f) in enumerate(units):
        A(f's_waitcnt vmcnt({pq.wait(f"u{i}")}) lgkmcnt(0)\ns_barrier')
        if i==depth:
            assert not pq.has('arm')
            A(f'v_min_u32 v{vT2}, -2, v35')
            A(f's_cmp_lg_u32 s{sWAVE}, 1\ns_cbranch_scc1 {L("noarr")}\ns_mov_b64 exec, 1\nv_mov_b32 v36, s{sPOL}\nbuffer_atomic_add v36, off, s[{S_DBG}:{S_DBG+3}], 0 offset:{DBG_INIT} sc1\ns_mov_b64 exec, -1\n{L("noarr")}:')
        if i+depth<len(units): issue(i+depth)
        for z in pend: A(z)
        pend=[]
        sl=i%NS
        tmp=[('v',72+16*(i&1)),('v',80+16*(i&1))] if False else [('v',(40,84)[i&1]),('v',(48,92)[i&1])]
        for t in range(2):
            dst=UR.get((kind,f,t),tmp[t])
            for p in range(4):
                A(f'ds_read_b64_tr_b16 {R(dst,2,2*p)}, v{68+2*(p>>1)+t} offset:{sl*4096+(p&1)*1024}')
        for t in range(2):
            if (kind,f,t) not in UR:
                o = NS*4096 if (kind,f)==HALF else sl*4096+t*2048
                lds[(kind,f,t)]=o
                pend+=[f'ds_write_b128 v{vWB}, {R(tmp[t],4)} offset:{o}',f'ds_write_b128 v{vWB}, {R(tmp[t],4,4)} offset:{o+1024}']
    A('s_waitcnt lgkmcnt(0)\ns_barrier')
    for z in pend: A(z)
    def WO(tile,kap): return UR[('o',4,kap)] if tile==4 else UR[('o',2*(tile>>1)+kap,tile&1)]
    A(f's_mov_b32 s{S_T0}, s{S_WS}\ns_mov_b32 s{S_T0+1}, s{S_WS+1}\ns_cmp_eq_u32 s{sRED}, 1\ns_cselect_b32 s{S_T0+2}, {hex(WS_SIZE)}, 0')
    rw=f's[{S_T0}:{S_T0+3}]'
    tmo=f's_add_u32 s{sTMO}, s{sTMO}, 1\ns_cmp_gt_u32 s{sTMO}, {CTMO}\ns_cbranch_scc1 {L("fail")}'
    A(f'{L("iw")}:\nbuffer_load_dword v36, off, s[{S_DBG}:{S_DBG+3}], 0 offset:{DBG_INIT} sc1\n{tmo}\ns_waitcnt vmcnt(0)\nv_readfirstlane_b32 s{sT}, v36\ns_and_b32 s{sT2}, s{sT}, 0xffff\ns_cmp_lt_u32 s{sT2}, 64\ns_cbranch_scc1 {L("iw")}')
    if diag: A(f's_mov_b32 s98, s{sT}')
    A(f's_lshr_b32 s{sT}, s{sT}, 16\ns_cmp_gt_u32 s{sT}, 32\ns_cselect_b32 s{sT}, 8192, 0')
    if polfix is not None: A(f's_mov_b32 s{sT}, {polfix*8192}')
    A(f's_add_u32 s{sPUBR}, s{sPUBR}, s{sT}\ns_xor_b32 s{sAGR}, s{sPUBR}, 0x100000\ns_add_u32 s{sAGR4}, s{sAGR}, 4096')
    A(f's_xor_b32 s{sT3}, s{sINB}, s{sINBX}')
    for base in (sINB,sT3):
        for j in range(2): A(f'buffer_load_dwordx4 v[16:19], v{vL16}, {rw}, s{base} offen offset:{1024*j} sc1')
    A(f's_lshl_b32 s{sT}, s{sRANK}, 7\ns_add_u32 s{sT}, s{sT}, {FL_QKV}\ns_add_u32 s{sFB}, s{S_WS}, s{sT}\ns_addc_u32 s{sFB+1}, s{S_WS+1}, 0')
    def kvwait(lab,first):
        ldf='\n'.join(f's_load_dword s{sFV+k}, s[{sFB}:{sFB+1}], {o} glc' for k,o in enumerate((0,4096,12288,16384)))
        if first: A(f's_branch {lab}b')
        A(f's_cmp_gt_u32 s{sRDY}, 63\ns_cbranch_scc1 {lab}e')
        A(f'{lab}a:\ns_min_u32 s{sT}, s{sFV}, s{sFV+1}\ns_min_u32 s{sT2}, s{sFV+2}, s{sFV+3}\ns_lshl_b32 s{sT}, s{sT}, 1\ns_lshl_b32 s{sT2}, s{sT2}, 1\ns_add_u32 s{sT2}, s{sT2}, 1\ns_min_u32 s{sRDY}, s{sT}, s{sT2}')
        A(f's_add_u32 s{sT}, s{sSTEP}, 1\ns_min_u32 s{sT}, s{sT}, 63\ns_cmp_gt_u32 s{sRDY}, s{sT}\ns_cbranch_scc1 {lab}d')
        A(f'{lab}b:\n{ldf}\n{tmo}\ns_waitcnt lgkmcnt(0)\ns_branch {lab}a')
        A(f'{lab}d:')
        if not first: A(ldf)
        A(f'{lab}e:')
    if diag: A(f's_memrealtime s[92:93]')
    if fused:
        kvwait(L('kv0'),True)
        A(f'buffer_load_dword v36, off, s[{S_DBG}:{S_DBG+3}], 0 offset:{DBG_X0} sc1\nbuffer_load_dword v37, off, s[{S_DBG}:{S_DBG+3}], 0 offset:{DBG_X1} sc1')
    A(f'buffer_load_dword v{vT1}, v{vTCH}, {ws}, 0 offen sc1')
    A('s_waitcnt vmcnt(0) lgkmcnt(0)')
    if diag: A('s_memrealtime s[94:95]\ns_waitcnt lgkmcnt(0)')
    if stamps: A('s_memtime s[76:77]\ns_waitcnt lgkmcnt(0)\n'+'\n'.join(f's_mov_b32 s{r}, 0' for r in range(78,100)))
    A(f's_mov_b32 s{S_DBG}, s{S_WS}\ns_mov_b32 s{S_DBG+1}, s{S_WS+1}\ns_cmp_eq_u32 s{sWAVE}, 3\ns_cselect_b32 s{S_DBG+2}, {hex(WS_SIZE)}, 0')
    if fused:
        A(f'v_min_u32 v36, v36, v37\ns_nop 0\nv_readfirstlane_b32 s{sT}, v36\ns_cmp_lt_u32 s{sT}, 32\ns_cbranch_scc1 {L("slowmode")}')
    chain_loop(A,False,'',lds,WO,kvwait,fused,stamps,nsteps,copies,**kw)
    if fused:
        A(f'{L("slowmode")}:')
        chain_loop(A,True,'_s',lds,WO,kvwait,fused,0,nsteps,copies,**kw)
    A(f'{L("fail")}:\n{L("done")}:')
    A('s_waitcnt vmcnt(0)')

def chain_loop(A, fallback, sfx, lds, WO, kvwait, fused, stamps, nsteps, copies, g_rs=(32,12,12), g_ag=(52,8,8,8,8), rem=(3,8,13,18,22), kvg=(26,30,34,38), cks=(1,2,3,5,6), up=1, pubpos=-1, agf='', tchf='sc1', dvp=(1,4,5), off='', trace=0, trw=1):
    sc='sc1' if fallback else ''
    L=lambda n: f'L_{n}' if n in ('fail','done') else f'L_{n}{sfx}'
    ws=f's[{S_WS}:{S_WS+3}]'; rw=f's[{S_T0}:{S_T0+3}]'
    tmo=f's_add_u32 s{sTMO}, s{sTMO}, 1\ns_cmp_gt_u32 s{sTMO}, {CTMO}\ns_cbranch_scc1 {L("fail")}'
    stamp_n=[0]
    def stamp(grp=1):
        if stamps and (grp & int(stamps)):
            A(f's_memtime s[{50+2*stamp_n[0]}:{51+2*stamp_n[0]}]'); stamp_n[0]+=1
    vm=Q(); lg=Q(); retry=[]
    acc={'q0':vACC,'q1':vACC+4,'k0':vACC+8,'k1':vACC+12,'v0':vACC+16,'v1':vACC+20}
    q0,q1,k0,k1,v0,v1=[acc[x] for x in ('q0','q1','k0','k1','v0','v1')]
    def nops(n):
        while n>0:
            k=min(n,16); A(f's_nop {k-1}'); n-=k
    def agload(f):
        base=(sAGL if f<4 else sAGL4) if f<5 else (sAGR if f<9 else sAGR4)
        return f'buffer_load_dwordx4 v[{AREG[f]}:{AREG[f]+3}], v{vL16}, {ws}, s{base} offen offset:{(PERM[f%5]%4)*1024} sc1'
    issued=set()
    def ag(f): A(agload(f).replace(' sc1',' '+agf)); vm.push(f'ag{f}'); issued.add(f)
    def T(s): return (s[0],int(s[1]),int(s[2]))
    order=[T(x) for x in ('v00 q00 k00 v01 q01 v10 k01 k10 v11 k11 q10 q20 k20 q11 q21 v20 k21 q30 v21 k30 v30 q31 k31 v31 q40 v40 k40 q41 v41 k41 '
                          'k50 q50 k51 q51 k60 q61 q60 k61 k70 q70 k71 q71 q80 k80 q81 k81 q90 k90 q91 k91').split()]
    assert len(order)==50 and len(set(order))==50
    ll=[x for x in order if x in lds]; assert len(ll)==19
    stbuf={x:vST+8*(i%3) for i,x in enumerate(ll)}
    def rdhalf(x,h):
        if 'l' in off: return
        A(f'ds_read_b128 v[{stbuf[x]+4*h}:{stbuf[x]+4*h+3}], v{vWB} offset:{lds[x]+1024*h}'); lg.push(f'{x}{h}')
    def smf(d,a,b): A(f'v_smfmac_f32_16x16x64_bf16 v[{d}:{d+3}], v[{a}:{a+3}], {b}, v{vIDX}')
    def mm(x):
        kind,f,t=x
        smf(acc[f'{kind}{t}'],AREG[f],f'v[{stbuf[x]}:{stbuf[x]+7}]' if x in lds else R(UR[x],8))
    def prestage():
        for x in ll[:3]:
            for h in range(2): rdhalf(x,h)
    zs=list(range(vACC+5,vACC+24))+list(range(vACC,vACC+5))
    def zero_acc():
        for r in zs: A(f'v_mov_b32 v{r}, 0')
    zero_acc(); prestage()
    A(f's_cmp_eq_u32 s{sRED}, 1\ns_cbranch_scc1 {L("pub2")}')
    A(f'{L("top")}:')
    stamp(4)
    A('s_barrier')
    stamp(4)
    def rts(k):
        if trace==2: A(f's_memrealtime s[{60+2*k}:{61+2*k}]')
    if trace==2:
        rts(2)
        A(f's_lshl_b32 s{sT2}, s{sSTEP}, 4\nv_mov_b32 v{vT1}, s{sT2}\ns_waitcnt lgkmcnt(0)\ns_cmp_eq_u32 s{sWAVE}, {trw}\ns_cselect_b64 exec, 1, 0')
        for k in range(4): A(f'v_mov_b32 v{vT0}, s{60+2*k}\nds_write_b32 v{vT1}, v{vT0} offset:{7168+4*k}'); lg.push('x')
        A('s_mov_b64 exec, -1')
    if trace==1:
        A(f's_memtime s[74:75]\ns_memrealtime s[72:73]\ns_lshl_b32 s{sT2}, s{sWAVE}, 6\ns_add_u32 s{sT2}, s{sT2}, s{sSTEP}\ns_lshl_b32 s{sT2}, s{sT2}, 2\nv_mov_b32 v{vT1}, s{sT2}\ns_waitcnt lgkmcnt(0)\ns_cmp_eq_u32 s{sWAVE}, 1\ns_cselect_b32 s74, s72, s74\nv_mov_b32 v{vT0}, s74\nds_write_b32 v{vT1}, v{vT0} offset:7168'); lg.push('x')
    pubR=f'buffer_store_dword v{vT2}, v{vPUBR}, {rw}, s{sPUBR} offen sc1'
    for f in range(5):
        nops(g_ag[f]); ag(f)
        if pubpos==f: A(pubR); vm.push('pr')
    for k,f in enumerate(range(5,9)):
        if rem[k]<0: nops(-rem[k]); ag(f)
    stamp(4)
    def ckA(f):
        if 'c' in off and f:
            if vm.has(f'ag{f}') and 'w' not in off: A(f's_waitcnt vmcnt({vm.wait(f"ag{f}")})')
            return
        if '1' in off and f: return
        a=AREG[f]
        if vm.has(f'ag{f}'): A(f's_waitcnt vmcnt({vm.wait(f"ag{f}")})')
        A(f'v_max3_u32 v{vT1}, v{a}, v{a+1}, v{a+2}')
    def ckB(f):
        if ('c' in off or '1' in off) and f: return
        A(f'v_max_u32 v{vT1}, v{vT1}, v{AREG[f]+3}')
    def ckC(f):
        if 'c' in off and f: return
        if '1' in off and f:
            if vm.has(f'ag{f}'): A(f's_waitcnt vmcnt({vm.wait(f"ag{f}")})')
            A(f'v_cmp_eq_u32 vcc, -1, v{AREG[f]+3}'); return
        A(f'v_cmp_eq_u32 vcc, -1, v{vT1}')
    def ckD(f):
        A(f's_cbranch_vccnz {L(f"rt{f}")}\n{L(f"ok{f}")}:')
        retry.append((f,[g for g in range(f,5 if f<5 else 10) if g in issued]))
    for f in range(up): ckA(f); ckB(f); ckC(f); ckD(f)
    stamp(5); rts(3)
    n=len(order); gaps=[[] for _ in range(n+2)]
    first={f:min(i for i,x in enumerate(order) if x[1]==f) for f in range(10)}
    last={f:max(i for i,x in enumerate(order) if x[1]==f) for f in range(10)}
    for f in range(up,10):
        u=first[f]
        if f in cks:
            gaps[u].append((0,lambda f=f: ckD(f)))
            gaps[u-2].append((2,lambda f=f: ckC(f))); gaps[u-3].append((2,lambda f=f: ckB(f))); gaps[u-4].append((2,lambda f=f: ckA(f)))
        else: gaps[u].append((8,lambda f=f: A(f's_waitcnt vmcnt({vm.wait(f"ag{f}")})')))
    for i,x in enumerate(ll):
        u=order.index(x)
        gaps[u].append((9,lambda x=x: A(f's_waitcnt lgkmcnt({lg.wait(f"{x}1")})') if lg.has(f'{x}1') else None))
        if i+3<len(ll):
            y=ll[i+3]
            gaps[u+1].append((1,lambda y=y: rdhalf(y,0))); gaps[u+2].append((1,lambda y=y: rdhalf(y,1)))
    for k,f in enumerate(range(5,10)):
        if rem[k]>=0: gaps[rem[k]].append((3,lambda f=f: ag(f)))
    assert rem[4]>last[0]
    def kvload(f):
        if 'k' in off: return
        A(f'buffer_load_dwordx4 v[{AREG[f]}:{AREG[f]+3}], v{vL16}, {ws}, s{sKV} offen offset:{1024*(f-1)} sc1'); vm.push(f'kv{f}')
    for f in range(1,5): gaps[max(last[f]+1,kvg[f-1])].append((3,lambda f=f: kvload(f)))
    for i in range(n):
        for _,fn in sorted(gaps[i],key=lambda z:z[0]): fn()
        if i==30: stamp()
        if i in (5,11,17,24,30,38): stamp(4)
        mm(order[i])
    assert not gaps[n] and not gaps[n+1]
    stamp()
    dq=[('v',f,t) for f in range(5,10) for t in range(2)]
    def dv(n,between=None):
        for _ in range(n):
            if dq:
                mm(dq.pop(0))
                if between: A(between.pop(0))
    def padd(d,x,y): A(f'v_pk_add_f32 v[{d}:{d+1}], v[{x}:{x+1}], v[{y}:{y+1}]')
    def cvt(d,x,y): A(f'v_cvt_pk_bf16_f32 v{d}, v{x}, v{y}')
    A(f's_add_u32 s{sSTEP}, s{sSTEP}, 1\ns_add_u32 s{sRINGB}, s{sRING}, 65536')
    A('s_nop 1')
    A(f's_mov_b64 s[4:5], -1\n{L("again")}:')
    padd(q0,q0,q0+2); padd(k0,k0,k0+2); padd(q1,q1,q1+2); padd(k1,k1,k1+2)
    cvt(k0,k0,k0+1); cvt(k0+1,q0,q0+1); cvt(k0+2,k1,k1+1); cvt(k0+3,q1,q1+1)
    A(f'v_mfma_f32_16x16x16_bf16 v[{q0}:{q0+3}], v[{k0}:{k0+1}], v[{vID}:{vID+1}], 0')
    A(f's_mov_b64 vcc, s[{sMC}:{sMC+1}]')
    A(f'v_mfma_f32_16x16x16_bf16 v[{q1}:{q1+3}], v[{k0+2}:{k0+3}], v[{vID}:{vID+1}], 0')
    A(f'v_cmp_u_f32 s[6:7], v{k1}, v{k1+1}')
    for r in range(4): A(f'v_mov_b32 v{vT0+r}, -1')
    A(f's_waitcnt vmcnt({vm.wait("kv2") if vm.has("kv2") else 0})')
    X=k1
    cvt(X,q0,q0+1); cvt(X+1,q0+2,q0+3); cvt(X+2,q1,q1+1); cvt(X+3,q1+2,q1+3)
    A(f's_and_b64 s[6:7], s[6:7], s[4:5]\ns_cbranch_scc1 {L("net")}')
    stamp()
    T1,T2,T0=q0,q1,k0
    A(f'v_mfma_f32_16x16x32_bf16 v[{T1}:{T1+3}], v[{vKX}:{vKX+3}], v[{X}:{X+3}], 0')
    A(f'v_mov_b32 v{vST+1}, s{sSTEP}')
    A(f'v_mfma_f32_16x16x32_bf16 v[{T2}:{T2+3}], v[{vKX+4}:{vKX+7}], v[{X}:{X+3}], 0')
    if 'f' not in off: A(f'buffer_store_dword v{vST+1}, off, s[{S_DBG}:{S_DBG+3}], s{sFLG} sc1'); vm.push('fl')
    else: A('s_nop 0')
    A(f'v_mfma_f32_16x16x32_bf16 v[{T0}:{T0+3}], v[{X}:{X+3}], v[{X}:{X+3}], 0')
    ra=[f'buffer_store_dwordx4 v[{vT0}:{vT0+3}], v{vL16}, {rw}, s{sINB} offen offset:{1024*j} {sc}' for j in range(2)]
    if 't' not in off: A(f'buffer_load_dword v{vKX+7}, v{vTCH}, {ws}, s{sTOUCH} offen {tchf}'); vm.push('tch')
    else: A('s_nop 0')
    A(f'v_add_u32 v{vST}, s{sW4}, v{vL16}')
    dv(dvp[0]); A(f's_add_u32 s{sTOUCH}, s{sTOUCH}, {SEGB}\ns_add_u32 s{sKV}, s{sKV}, {SEGB}'); nops(2-dvp[0])
    dq2='quad_perm:[2,3,0,1] row_mask:0xf bank_mask:0xf'
    U=k1
    for r in range(4): A(f'v_cndmask_b32_dpp v{U+r}, v{T1+r}, v{T2+r}, vcc {dq2}')
    A(f'ds_write_b128 v{vSW}, v[{U}:{U+3}]'); lg.push('x')
    A(f'v_cndmask_b32_dpp v{T0+2}, v{T0}, v{T0+1}, vcc {dq2}')
    A(f'ds_write_b32 v{vST}, v{T0+2} offset:{LDS_T0}'); lg.push('S')
    xa=vKX+4
    bt=[f'v_xor_b32 v{xa+k}, {1024*(k+1)}, v{vSW}' for k in range(3)]
    bt.append(ra[0]); vm.push('ra')
    A(bt.pop(0)); dv(dvp[1],bt)
    for z in bt: A(z)
    A(f's_waitcnt lgkmcnt({lg.wait("S")})')
    stamp()
    A('s_barrier')
    a=vACC; tz=vKX
    A(f'ds_read_b128 v[{tz}:{tz+3}], v{vL16} offset:{LDS_T0}')
    for k in range(3): A(f'ds_read_b128 v[{a+4*k}:{a+4*k+3}], v{xa+k}')
    bt=[ra[1]]; vm.push('ra')
    dv(dvp[2],bt)
    for z in bt: A(z)
    A('s_waitcnt lgkmcnt(0)'); lg.q=[]
    padd(tz,tz,tz+2); padd(a,a,a+4); padd(a+2,a+2,a+6); padd(a+8,a+8,a+12); padd(a+10,a+10,a+14)
    A(f'v_add_f32 v{a+4}, v{tz}, v{tz+1}')
    padd(a,a,a+8); padd(a+2,a+2,a+10)
    m,m2=a+5,a+6
    stamp()
    VM=a+8; zz=[VM+3,VM+4,VM+6,VM+7]
    ONE=vST+8; P=vST+12; O0=vST+16; O1=vST+4; SUM=vST; PMA=VM+2; PMB=VM+4
    def two():
        dv(1)
        for _ in range(2): A(f'v_mov_b32 v{zz.pop(0)}, 0')
    A(f'v_max3_f32 v{m}, v{a}, v{a+1}, v{a+4}\nv_max3_f32 v{m}, v{m}, v{a+2}, v{a+3}')
    A(f'v_mov_b32 v{ONE}, 0x3f803f80\nv_mov_b32 v{ONE+1}, 0x3f803f80')
    A(f'v_max_f32_dpp v{m}, v{m}, v{m} {dq2}')
    A(f'v_mov_b32 v{m2}, v{m}'); two(); A(f'v_permlane16_swap_b32 v{m}, v{m2}\nv_max_f32 v{m}, v{m}, v{m2}')
    A(f'v_mov_b32 v{m2}, v{m}'); two(); A(f'v_permlane32_swap_b32 v{m}, v{m2}\nv_max_f32 v{m}, v{m}, v{m2}')
    dv(len(dq))
    A(f'v_mul_f32 v{m}, s{sC}, v{m}')
    for r in range(5): A(f'v_fma_f32 v{a+r}, v{a+r}, s{sC}, -v{m}')
    for r in range(5): A(f'v_exp_f32 v{a+r}, v{a+r}')
    cvt(P,a,a+1); cvt(P+1,a+2,a+3)
    A(f'v_mov_b32_dpp v{m2}, v{a+4} {dq2}\nv_mov_b32_dpp v{P+2}, v{P} {dq2}\nv_mov_b32_dpp v{P+3}, v{P+1} {dq2}')
    padd(v0,v0,v0+2); padd(v1,v1,v1+2)
    if vm.has('kv4'): A(f's_waitcnt vmcnt({vm.wait("kv4")})')
    stamp()
    A(f'v_mfma_f32_16x16x32_bf16 v[{O0}:{O0+3}], v[{vVX}:{vVX+3}], v[{P}:{P+3}], 0')
    cvt(VM,v0,v0+1); cvt(VM+1,v1,v1+1)
    A(f'v_mfma_f32_16x16x32_bf16 v[{O1}:{O1+3}], v[{vVX+4}:{vVX+7}], v[{P}:{P+3}], 0')
    cvt(PMA,a+4,m2); cvt(PMB+1,a+4,m2)
    A('s_nop 1')
    A(f'v_mfma_f32_16x16x32_bf16 v[{O0}:{O0+3}], v[{VM}:{VM+3}], v[{PMA}:{PMA+3}], v[{O0}:{O0+3}]')
    A(f'v_mov_b32 v{ONE+2}, 0x3f803f80\nv_mov_b32 v{ONE+3}, 0x3f803f80')
    A(f'v_mfma_f32_16x16x32_bf16 v[{O1}:{O1+3}], v[{VM}:{VM+3}], v[{PMB}:{PMB+3}], v[{O1}:{O1+3}]')
    dz=list(range(vA,vA+20))
    for _ in range(4): A(f'v_mov_b32 v{dz.pop(0)}, 0')
    A(f's_mov_b64 exec, s[{sM3}:{sM3+1}]')
    OQ=a
    cvt(OQ,O0,O0+1); cvt(OQ+1,O0+2,O0+3); A('s_nop 0'); cvt(OQ+2,O1,O1+1); cvt(OQ+3,O1+2,O1+3)
    A(f'ds_write_b128 v{vOW}, v[{OQ}:{OQ+3}]\ns_mov_b64 exec, -1')
    stamp()
    for _ in range(12): A(f'v_mov_b32 v{dz.pop(0)}, 0')
    D=[vA+4*t for t in range(5)]
    A('s_waitcnt lgkmcnt(0)\ns_barrier')
    stamp(3)
    OA=[a+16,a+20]
    A(f'ds_read_b128 v[{OA[0]}:{OA[0]+3}], v{vL16} offset:{LDS_O}\nds_read_b128 v[{OA[1]}:{OA[1]+3}], v{vL16} offset:{LDS_O+1024}')
    for _ in range(4): A(f'v_mov_b32 v{dz.pop(0)}, 0')
    A(f'v_mfma_f32_16x16x32_bf16 v[{SUM}:{SUM+3}], v[{P}:{P+3}], v[{ONE}:{ONE+3}], 0')
    A(f'v_mfma_f32_16x16x32_bf16 v[{SUM}:{SUM+3}], v[{PMB}:{PMB+3}], v[{ONE}:{ONE+3}], v[{SUM}:{SUM+3}]')
    A('s_waitcnt lgkmcnt(1)' if not stamps else 's_waitcnt lgkmcnt(0)')
    stamp(2)
    wo=lambda t,k: smf(D[t],OA[k],R(WO(t,k),8))
    RD=a
    sca=[f's_add_u32 s{sAGL}, s{sAGL}, {SEGB}',f's_add_u32 s{sAGL4}, s{sAGL4}, {SEGB}',f's_add_u32 s{sAGR}, s{sAGR}, 16384',f's_add_u32 s{sAGR4}, s{sAGR4}, 16384',f's_add_u32 s{sPUBR}, s{sPUBR}, 16384',f's_xor_b32 s{sINB}, s{sINB}, s{sINBX}']
    d=D[4]
    wo(4,0); A('s_nop 0'); wo(0,0); A('s_waitcnt lgkmcnt(0)' if not stamps else 's_nop 0'); wo(4,1); A('s_nop 0'); A(sca[0])
    wo(1,0); A(f'v_rcp_f32 v{SUM}, v{SUM}'); A(sca[1]); A(sca[2])
    wo(0,1); A(f'v_rcp_f32 v{SUM+1}, v{SUM+1}'); A(sca[3])
    wo(1,1); A(f'v_add_f32 v{d}, v{d}, v{d+2}'); A(sca[4])
    wo(2,0); A(f'v_add_f32 v{d+1}, v{d+1}, v{d+3}'); A(sca[5])
    wo(3,0); A(f'v_mul_f32 v{d}, v{d}, v{SUM}')
    wo(2,1); A(f'v_mul_f32 v{d+1}, v{d+1}, v{SUM+1}')
    wo(3,1); cvt(RD+4,d,d+1)
    stamp(2)
    A(f'buffer_store_dword v{RD+4}, v{vRSC}, {ws}, s{sRING} offen {sc}')
    def pmul(d): A(f'v_pk_mul_f32 v[{d}:{d+1}], v[{d}:{d+1}], v[{SUM}:{SUM+1}]')
    for t,base in ((0,sRING),(2,sRINGB)):
        padd(D[t],D[t],D[t]+2); padd(D[t+1],D[t+1],D[t+1]+2); pmul(D[t]); pmul(D[t+1]); cvt(RD+t,D[t],D[t]+1); cvt(RD+t+1,D[t+1],D[t+1]+1)
        stamp(2)
        A(f'buffer_store_dwordx2 v[{RD+t}:{RD+t+1}], v{vRSA}, {ws}, s{base} offen {sc}')
    stamp(3); rts(0)
    zero_acc()
    A(f's_xor_b32 s{sRING}, s{sRING}, s{sRINGX}')
    A(f's_cmp_eq_u32 s{sRED}, 0\ns_cbranch_scc1 {L("nred")}')
    RC=vA+16; RBUF=[vA,vA+8,vKX,vVX][:len(g_rs)]; nb=len(RBUF)
    def rsload(b):
        for j in range(2): A(f'buffer_load_dwordx4 v[{b+4*j}:{b+4*j+3}], v{vL16}, {ws}, s{sINB} offen offset:{1024*j} sc1')
    def rschk(b):
        n=2*(nb-1)
        A(f's_waitcnt vmcnt({n+1})\nv_mfma_f32_16x16x32_bf16 v[{RC}:{RC+3}], v[{vSEL}:{vSEL+3}], v[{b}:{b+3}], 0')
        A(f'v_max3_u32 v{vT1}, v{b}, v{b+1}, v{b+2}')
        A(f's_waitcnt vmcnt({n})\nv_mfma_f32_16x16x32_bf16 v[{RC}:{RC+3}], v[{vSEL}:{vSEL+3}], v[{b+4}:{b+7}], v[{RC}:{RC+3}]')
        A(f'v_max3_u32 v{vT0}, v{b+4}, v{b+5}, v{b+6}\nv_max3_u32 v{vT1}, v{vT1}, v{b+3}, v{b+7}\nv_max_u32 v{vT1}, v{vT1}, v{vT0}\nv_cmp_eq_u32 vcc, -1, v{vT1}')
    pre=[(x,h) for x in ll[:3] for h in range(2)]
    for k,b in enumerate(RBUF):
        n_=g_rs[k]
        while n_>=4 and pre: rdhalf(*pre.pop(0)); n_-=4
        nops(n_); rsload(b)
    for z in pre: rdhalf(*z)
    stamp(2)
    if stamps==2: A(f's_waitcnt vmcnt({2*(nb-1)})'); stamp(2)
    rschk(RBUF[0])
    A(f's_cbranch_vccnz {L("rs_1")}')
    A(f'{L("rsok")}:\ns_nop 2'); rts(1)
    A(f'v_add_f32_dpp v{RC+2}, v{RC}, v{RC} row_ror:4 row_mask:0xf bank_mask:0xf\nv_add_f32_dpp v{RC+3}, v{RC+1}, v{RC+1} row_ror:4 row_mask:0xf bank_mask:0xf\ns_nop 0')
    A(f'v_add_f32_dpp v{RC}, v{RC+2}, v{RC+2} row_ror:8 row_mask:0xf bank_mask:0xf\nv_add_f32_dpp v{RC+1}, v{RC+3}, v{RC+3} row_ror:8 row_mask:0xf bank_mask:0xf')
    cvt(vT2,RC,RC+1)
    A(f'v_min_u32 v{vT2}, -2, v{vT2}')
    A(f'{L("pub2")}:')
    A(f'buffer_store_dword v{vT2}, v{vPUB}, {ws}, s{sAGL} offen {sc}')
    if pubpos<0: A(pubR)
    A(f'{L("send")}:')
    stamp(7)
    if stamps:
        A('s_waitcnt lgkmcnt(0)')
        prev=76
        A(f's_sub_u32 s{sT2}, s{sSTEP}, 6\ns_cmp_ge_u32 s{sT2}, 24\ns_cbranch_scc1 {L("nacc")}')
        for i in range(stamp_n[0]):
            A(f's_sub_u32 s{sT2}, s{50+2*i}, s{prev}\ns_add_u32 s{78+i}, s{78+i}, s{sT2}'); prev=50+2*i
        A(f'{L("nacc")}:\ns_mov_b32 s76, s{prev}')
    A(f's_cmp_lt_u32 s{sSTEP}, {nsteps}\ns_cbranch_scc1 {L("top")}')
    if pubpos>=0: A(pubR)
    A(f's_branch {L("done")}')
    A(f'{L("nred")}:')
    if fused: kvwait(L('kvw'),False)
    prestage(); A(f's_branch {L("send")}')
    A(f'{L("rs_1")}:')
    for k in range(nb):
        rsload(RBUF[k])
        if stamps: A('s_add_u32 s98, s98, 1')
        rschk(RBUF[(k+1)%nb]); A(f's_cbranch_vccz {L("rsok")}')
    A(tmo); A(f's_branch {L("rs_1")}')
    for f,lst in retry:
        a_=AREG[f]
        A(f'{L(f"rt{f}")}:')
        for g in lst: A(agload(g))
        A(tmo)
        if stamps: A(f's_add_u32 s{96 if f<5 else 97}, s{96 if f<5 else 97}, {1 if f%5==0 else 0x10000}')
        for n_,g in enumerate(lst):
            b_=AREG[g]
            A(f's_waitcnt vmcnt({len(lst)-1-n_})')
            if n_==0: A(f'v_max3_u32 v{vT1}, v{b_}, v{b_+1}, v{b_+2}\nv_max_u32 v{vT1}, v{vT1}, v{b_+3}\nv_cmp_eq_u32 vcc, -1, v{vT1}\ns_cbranch_vccnz {L(f"rt{f}")}')
            else: A(f'v_max3_u32 v{vT1}, v{vT1}, v{b_}, v{b_+1}\nv_max3_u32 v{vT1}, v{vT1}, v{b_+2}, v{b_+3}')
        A(f'v_cmp_eq_u32 vcc, -1, v{vT1}\ns_cbranch_vccz {L(f"ok{f}")}\ns_branch {L(f"rt{f}")}')
    A(f'{L("net")}:')
    if stamps: A('s_add_u32 s98, s98, 0x10000')
    A('s_mov_b64 s[4:5], 0\ns_waitcnt vmcnt(0)\ns_nop 7')
    zero_acc()
    for f in range(10):
        a_=vA if f<5 else AREG[f]
        A(f'{L(f"nt{f}")}:'); A(agload(f).replace(f'v[{AREG[f]}:{AREG[f]+3}]',f'v[{a_}:{a_+3}]')); A(tmo)
        A(f's_waitcnt vmcnt(0)\nv_max3_u32 v{vT1}, v{a_}, v{a_+1}, v{a_+2}\nv_max_u32 v{vT1}, v{vT1}, v{a_+3}\nv_cmp_eq_u32 vcc, -1, v{vT1}\ns_cbranch_vccnz {L(f"nt{f}")}')
        for x in order:
            if x[1]!=f: continue
            if x in lds:
                A(f'ds_read_b128 v[{vST}:{vST+3}], v{vWB} offset:{lds[x]}\nds_read_b128 v[{vST+4}:{vST+7}], v{vWB} offset:{lds[x]+1024}\ns_waitcnt lgkmcnt(0)')
            smf(acc[f'{x[0]}{x[2]}'],a_,f'v[{vST}:{vST+7}]' if x in lds else R(UR[x],8))
    A(f's_nop 7\ns_branch {L("again")}')
```

```python
from common import *
from att import poll, TMO
import qkv
sWAVE=22
def ma_code(A, idreg=21, sfx='m', fail='L_end', polfix=None, sleep=2):
    L=lambda n: f'L_{n}{sfx}'
    sH,sSEG,sT,sT2,sKV,sQ,sM,sO,sC,sN,sFO,sM0,sPOL,sQT,sEH=24,25,26,27,28,29,30,31,32,33,34,35,52,53,54
    sMK=36
    vL=255
    WV=lambda n: ('a',160+4*n) if n<24 else ('v',176+4*(n-24))
    Qr,Kr,Vr,Xr,VM,S,PM,P,O,MB,AC=16,32,64,80,96,100,112,124,128,144,160
    L_X=10240; L_V=14336
    A(f's_lshr_b32 s{sH}, s{idreg}, 1\ns_and_b32 s{sSEG}, s{idreg}, 1\ns_and_b32 s{sQT}, s{sWAVE}, 1\ns_lshr_b32 s{sEH}, s{sWAVE}, 1')
    A('s_load_dwordx2 s[36:37], s[0:1], 32\ns_waitcnt lgkmcnt(0)')
    A.srd(S_T0,36,5242880)
    qkv.w_issue(A,sH,sT,sT2,sM0)
    A(f'buffer_load_dword v10, off, {DBG}, 0 offset:{DBG_INIT} sc1')
    A(f's_mul_i32 s{sT2}, s{sSEG}, 96\ns_add_u32 s{sT2}, s{sT2}, s{sH}\nv_lshl_add_u32 v11, v{vL}, 5, s{sT2}\nv_lshlrev_b32 v11, 7, v11\nv_add_u32 v11, {FL_QKV}, v11\ns_mov_b32 s{sN}, 32')
    poll(A,L('pq'),fail,f'buffer_load_dword v12, v11, {WS}, 0 offen sc1',12,sN,sT,mask=7)
    A(f'v_readfirstlane_b32 s{sT}, v10\ns_lshr_b32 s{sT}, s{sT}, 16\ns_cmp_gt_u32 s{sT}, 32\ns_cselect_b32 s{sPOL}, 8192, 0')
    if polfix is not None: A(f's_mov_b32 s{sPOL}, {polfix*8192}')
    A(f's_add_u32 s{sPOL}, s{sPOL}, {WS_AGR}')
    A('s_barrier')
    qkv.w_read(A,WV)
    A(f'v_lshlrev_b32 v0, 4, v{vL}\nv_lshlrev_b32 v3, 2, v2\ns_lshl_b32 s{sT}, s{sQT}, 4\nv_add_u32 v10, s{sT}, v1')
    for r in range(8): A(f'v_add_u32 v4, {(r&3)+16*(r>>2)}, v3\nv_cmp_le_u32 s[{sMK+2*r}:{sMK+2*r+1}], v4, v10')
    A(f'v_mov_b32 v5, {hex(0xd028965f)}\ns_mov_b32 s{sC}, {hex(0x3e0293ee)}')
    A('v_and_b32 v3, 13, v1\nv_lshlrev_b32 v3, 4, v3\nv_and_b32 v4, 1, v2\nv_lshrrev_b32 v10, 1, v2')
    A('v_lshl_add_u32 v6, v4, 8, v3\nv_lshl_add_u32 v6, v10, 5, v6\nv_lshl_add_u32 v7, v10, 8, v3\nv_lshl_add_u32 v7, v4, 5, v7')
    A(f's_lshl_b32 s{sT}, s{sWAVE}, 10\nv_add_u32 v3, s{sT}, v0\nv_lshrrev_b32 v4, 2, v3\nv_lshrrev_b32 v12, 1, v3\ns_lshl_b32 s{sT}, s{sEH}, 10\nv_lshrrev_b32 v13, 1, v0\nv_add_u32 v13, s{sT}, v13')
    for r in range(PM,PM+12): A(f'v_mov_b32 v{r}, 0')
    A(f's_lshl_b32 s{sFO}, s{sSEG}, 7\ns_lshl_b32 s{sT}, s{sH}, 2\ns_add_u32 s{sFO}, s{sFO}, s{sT}\ns_add_u32 s{sFO}, s{sFO}, {FL_O}')
    A(f's_lshl_b32 s55, s{sSEG}, 5\ns_add_u32 s55, s55, s{sH}\ns_lshl_b32 s55, s55, 7\ns_add_u32 s55, s55, {FL_KVM}')
    A('s_waitcnt lgkmcnt(0)')
    A(f'{L("loop")}:')
    A(f's_mul_i32 s{sKV}, s{sSEG}, {SEGB}\ns_lshl_b32 s{sT}, s{sH}, 14\ns_add_u32 s{sKV}, s{sKV}, s{sT}')
    A(f's_lshl_b32 s{sT}, s{sSEG}, 5\ns_add_u32 s{sT}, s{sT}, s{sH}\ns_lshl_b32 s{sQ}, s{sT}, 13\ns_lshl_b32 s{sT}, s{sQT}, 10\ns_add_u32 s{sQ}, s{sQ}, s{sT}\ns_add_u32 s{sQ}, s{sQ}, {WS_Q}')
    A(f's_lshl_b32 s{sO}, s{sSEG}, 1\ns_add_u32 s{sO}, s{sO}, s{sQT}\ns_lshl_b32 s{sO}, s{sO}, 5\ns_add_u32 s{sO}, s{sO}, s{sH}\ns_lshl_b32 s{sO}, s{sO}, 1\ns_add_u32 s{sO}, s{sO}, s{sEH}\ns_lshl_b32 s{sO}, s{sO}, 11\ns_add_u32 s{sO}, s{sO}, {WS_O}')
    A(f's_lshl_b32 s{sM}, s{sSEG}, 14\ns_add_u32 s{sM}, s{sM}, s{sPOL}')
    for kk in range(4):
        A(f'buffer_load_dwordx4 v[{Qr+4*kk}:{Qr+4*kk+3}], v0, {WS}, s{sQ} offen offset:{(kk&1)*2048} sc1')
        if kk==1: A(f's_add_u32 s{sQ}, s{sQ}, 4096')
    A(f's_lshl_b32 s{sT}, s{sEH}, 13\ns_add_u32 s{sT}, s{sT}, s{sKV}')
    for kk in range(4):
        for t in range(2): A(f'buffer_load_dwordx4 v[{Kr+8*kk+4*t}:{Kr+8*kk+4*t+3}], v0, {WS}, s{sKV} offen offset:{1024*t} sc1')
        A(f's_add_u32 s{sKV}, s{sKV}, 4096')
    for i in range(4):
        A(f'buffer_load_dwordx4 v[{Vr+4*i}:{Vr+4*i+3}], v0, {WS}, s{sT} offen offset:{2048+1024*(i&1)} sc1')
        if i==1: A(f's_add_u32 s{sT}, s{sT}, 4096')
    A(f's_cmp_lg_u32 s{sWAVE}, 0\ns_cbranch_scc1 {L("go")}\ns_add_u32 s{sN}, s{sSEG}, 1\ns_min_u32 s{sN}, s{sN}, 63')
    poll(A,L('pm'),fail,f'buffer_load_dword v10, off, {WS}, s55 sc1',10,sN,sT,mask=1,sleep=sleep)
    A(f'{L("go")}:\ns_barrier')
    def mf(d,a,b,first): A(f'v_mfma_f32_16x16x32_bf16 v[{d}:{d+3}], {a}, {b}, '+('0' if first else f'v[{d}:{d+3}]'))
    vv=lambda r: f'v[{r}:{r+3}]'
    T0_,T1_,T2_=S,S+4,S+8
    A(f's_add_u32 s{sT}, s{sM}, 0x100000\ns_add_u32 s{sT2}, s{sM}, 4096\ns_add_u32 s{sQ}, s{sT}, 4096\ns_mov_b32 s{sN}, 0')
    ld=[f'buffer_load_dwordx4 v[{MB}:{MB+3}], v3, {WS}, s{sM} offen sc1',f'buffer_load_dwordx4 v[{MB+4}:{MB+7}], v3, {WS}, s{sT} offen sc1',f'buffer_load_dword v{MB+8}, v4, {WS}, s{sT2} offen sc1',f'buffer_load_dword v{MB+9}, v4, {WS}, s{sQ} offen sc1']
    for z in ld: A(z)
    A('s_waitcnt vmcnt(8)')
    for kk in range(4): mf(T1_,vv(Kr+8*kk),vv(Qr+4*kk),kk==0); mf(T2_,vv(Kr+8*kk+4),vv(Qr+4*kk),kk==0)
    A(f'{L("ck")}:\ns_waitcnt vmcnt(0)\nv_max3_u32 v10, v{MB}, v{MB+1}, v{MB+2}')
    for k in range(3,9,2): A(f'v_max3_u32 v10, v10, v{MB+k}, v{MB+k+1}')
    A(f'v_max_u32 v10, v10, v{MB+9}\nv_cmp_eq_u32 vcc, -1, v10\ns_cbranch_vccz {L("okm")}')
    for z in ld: A(z)
    A(f's_add_u32 s{sN}, s{sN}, 1\ns_cmp_gt_u32 s{sN}, {TMO}\ns_cbranch_scc1 {fail}\ns_branch {L("ck")}\n{L("okm")}:')
    A(f'ds_write_b128 v3, v[{MB}:{MB+3}]\nds_write_b128 v3, v[{MB+4}:{MB+7}] offset:5120\nds_write_b32 v4, v{MB+8} offset:4096\nds_write_b32 v4, v{MB+9} offset:{5120+4096}')
    for r in range(8): A(f'v_cndmask_b32 v{T1_+r}, v5, v{T1_+r}, s[{sMK+2*r}:{sMK+2*r+1}]')
    A('s_waitcnt lgkmcnt(0)\ns_barrier')
    lg=Q()
    def rd(kk):
        F=kk>>1; b=MB+4*(kk%4)
        A(f'ds_read_b128 v[{b}:{b+3}], v{7 if F%5==4 else 6} offset:{F*1024+(kk&1)*512}'); lg.push(kk)
    for kk in range(3): rd(kk)
    for kk in range(20):
        A(f's_waitcnt lgkmcnt({lg.wait(kk)})')
        x=vv(MB+4*(kk%4))
        for T in range(2):
            mf(AC+4*T,f'a[{(kk*2+T)*4}:{(kk*2+T)*4+3}]',x,kk==0)
            if T==0 and kk+3<20: rd(kk+3)
        for T in range(2):
            k_,r=WV(kk*2+T); mf(AC+8+4*T,x,f'{k_}[{r}:{r+3}]',kk==0)
    A('s_nop 4')
    for h in range(4): cvt(A,Xr+h,AC+2*h,AC+2*h+1)
    A(f'ds_write_b128 v3, v[{Xr}:{Xr+3}] offset:{L_X}')
    cvt(A,VM,AC+8,AC+9); cvt(A,VM+1,AC+12,AC+13)
    A(f'ds_write_b64 v12, v[{VM}:{VM+1}] offset:{L_V}\ns_waitcnt lgkmcnt(0)\ns_barrier')
    for kk in range(4): A(f'ds_read_b128 v[{Xr+4*kk}:{Xr+4*kk+3}], v0 offset:{L_X+1024*kk}')
    for i in range(2): A(f'ds_read_b64 v[{VM+2*i}:{VM+2*i+1}], v13 offset:{L_V+512*i}')
    for kk in range(4):
        A(f's_waitcnt lgkmcnt({5-kk})'); mf(T0_,vv(Xr+4*kk),vv(Qr+4*kk),kk==0)
    x=list(range(T1_,T1_+8))+[T0_,T0_+1]; m=10
    A(f'v_max_f32 v{m}, v{x[0]}, v{x[1]}')
    for i in range(2,8,2): A(f'v_max3_f32 v{m}, v{m}, v{x[i]}, v{x[i+1]}')
    A(f's_nop 3\nv_max3_f32 v{m}, v{m}, v{x[8]}, v{x[9]}')
    def xred(op):
        for sw in ('16','32'): A(f'v_mov_b32 v{m+1}, v{m}\ns_nop 1\nv_permlane{sw}_swap_b32 v{m}, v{m+1}\n{op} v{m}, v{m}, v{m+1}')
    xred('v_max_f32')
    A(f'v_mul_f32 v{m}, s{sC}, v{m}')
    for y in x: A(f'v_fma_f32 v{y}, v{y}, s{sC}, -v{m}')
    for y in x: A(f'v_exp_f32 v{y}, v{y}')
    A(f'v_add_f32 v{m}, v{x[0]}, v{x[1]}')
    for y in x[2:]: A(f'v_add_f32 v{m}, v{m}, v{y}')
    xred('v_add_f32')
    A(f'v_rcp_f32 v{m}, v{m}\ns_nop 0')
    for i in range(0,10,2): A(f'v_pk_mul_f32 v[{x[i]}:{x[i]+1}], v[{x[i]}:{x[i]+1}], v[{m}:{m+1}] op_sel_hi:[1,0]')
    for i in range(4): cvt(A,P+i,x[2*i],x[2*i+1])
    cvt(A,PM+2,x[8],x[9]); cvt(A,PM+9,x[8],x[9])
    A('s_waitcnt lgkmcnt(0)')
    win={0:2,1:8,2:0,3:6}
    for et in range(4): mf(O+4*et,vv(Vr+4*et),vv(P),True)
    for et in range(4): mf(O+4*et,vv(VM),vv(PM+win[et]),False)
    A(f's_add_u32 s{sSEG}, s{sSEG}, 2\ns_lshr_b32 s{sT}, s{sSEG}, 1\nv_mov_b32 v10, s{sT}\ns_nop 2')
    for mm in range(2):
        for h in range(4): cvt(A,Kr+4*mm+h,O+8*mm+2*h,O+8*mm+2*h+1)
        A(f'buffer_store_dwordx4 v[{Kr+4*mm}:{Kr+4*mm+3}], v0, {WS}, s{sO} offen offset:{1024*mm} sc1')
    A(f's_waitcnt vmcnt(0)\ns_barrier\ns_cmp_lg_u32 s{sWAVE}, 0\ns_cbranch_scc1 {L("nf")}')
    A(f's_mov_b64 exec, 1\nbuffer_store_dword v10, off, {WS}, s{sFO} sc1\ns_mov_b64 exec, -1\n{L("nf")}:')
    A(f's_cmp_lt_u32 s{sSEG}, 64\ns_cbranch_scc1 {L("loop")}')
```

```python
from common import *
sID,sWAVE,sTID=20,22,21
def w_issue(A,sHEAD,sT,sT2,sM0):
    vL=255
    A(f'v_and_b32 v1, 15, v{vL}\nv_lshrrev_b32 v2, 4, v{vL}')
    A('v_lshlrev_b32 v3, 1, v2\nv_xor_b32 v3, v3, v1\nv_lshlrev_b32 v3, 4, v3\nv_lshl_add_u32 v4, v2, 13, v3\nv_xor_b32 v5, 128, v4')
    A(f's_lshl_b32 s{sT}, s{sHEAD}, 8\ns_mul_i32 s{sT2}, s{sWAVE}, {160*8192}\ns_add_u32 s{sT}, s{sT}, s{sT2}\ns_mul_i32 s{sM0}, s{sWAVE}, 40960')
    for i in range(40):
        A(f's_mov_b32 m0, s{sM0}\ns_add_u32 s{sM0}, s{sM0}, 1024')
        A(f'buffer_load_dwordx4 v{4+((i>>1)&1)}, {T0}, s{sT} offen lds\ns_add_u32 s{sT}, s{sT}, 32768')
    A(f'v_bfe_u32 v6, v{vL}, 2, 2\nv_and_b32 v7, 1, v2\nv_lshl_add_u32 v7, v7, 2, v6\nv_lshlrev_b32 v7, 1, v7')
    A(f'v_bfe_u32 v8, v{vL}, 1, 1\ns_lshl_b32 s{sT}, s{sWAVE}, 2\nv_add_u32 v8, s{sT}, v8\nv_xor_b32 v8, v8, v7\nv_lshlrev_b32 v8, 4, v8')
    A(f'v_lshl_add_u32 v9, v2, 3, v6\nv_lshl_add_u32 v8, v9, 8, v8\nv_and_b32 v9, 1, v{vL}\nv_lshl_add_u32 v8, v9, 3, v8\nv_xor_b32 v9, 32, v8')
def w_read(A,dst):
    for kk in range(20):
        if kk and kk%8==0: A('v_add_u32 v8, 0x10000, v8\nv_add_u32 v9, 0x10000, v9')
        for T in range(2):
            for p in range(2):
                k_,r=dst(kk*2+T); r+=2*p
                A(f'ds_read_b64_tr_b16 {k_}[{r}:{r+1}], v{8+T} offset:{((kk%8)*32+4*p)*256}')
def qkv_code(A, flags=False, sfx='q'):
    L=lambda n: f'L_{n}{sfx}'
    sMAT,sHEAD,sHALF,sT,sT2,sOUT,sOSTR,sX,sIT,sM0,sFL=24,25,26,27,28,29,30,31,32,33,34
    vL=255
    A(f's_cmp_ge_u32 s{sID}, 96\ns_cselect_b32 s{sHALF}, 1, 0\ns_cselect_b32 s{sT}, 96, 0\ns_sub_u32 s{sT}, s{sID}, s{sT}')
    A(f's_lshr_b32 s{sMAT}, s{sT}, 5\ns_and_b32 s{sHEAD}, s{sT}, 31')
    A('s_load_dwordx2 s[36:37], s[0:1], 0\ns_load_dwordx2 s[38:39], s[0:1], 16\ns_load_dwordx4 s[40:43], s[0:1], 24\ns_waitcnt lgkmcnt(0)')
    A(f's_cmp_eq_u32 s{sMAT}, 1\ns_cselect_b32 s40, s42, s40\ns_cselect_b32 s41, s43, s41\ns_cmp_eq_u32 s{sMAT}, 2\ns_cselect_b32 s40, s38, s40\ns_cselect_b32 s41, s39, s41')
    A.srd(S_T0,40,5242880)
    w_issue(A,sHEAD,sT,sT2,sM0)
    A(f's_mul_i32 s{sT}, s{sWAVE}, 640\nv_add_u32 v20, s{sT}, v{vL}\ns_mov_b32 s{sT2}, 52429')
    for ii in range(10):
        A(f'v_mul_lo_u32 v21, v20, s{sT2}\nv_lshrrev_b32 v21, 22, v21\nv_mul_u32_u24 v22, 80, v21\nv_sub_u32 v23, v20, v22\nv_and_b32 v21, 15, v21\nv_xor_b32 v23, v23, v21\nv_add_lshl_u32 v{10+ii}, v22, v23, 4\nv_add_u32 v20, 64, v20')
    A('v_mul_u32_u24 v24, 1280, v1')
    for k in range(4): A(f'v_add_u32 v25, {4*k}, v2\nv_xor_b32 v25, v25, v1\nv_lshl_add_u32 v{20+k}, v25, 4, v24')
    A(f'v_lshlrev_b32 v0, 4, v{vL}')
    A(f's_lshl_b32 s{sT}, s{sHEAD}, 14\ns_lshl_b32 s{sT2}, s{sWAVE}, 12\ns_add_u32 s{sOUT}, s{sT}, s{sT2}\ns_lshl_b32 s{sT}, s{sMAT}, 11\ns_add_u32 s{sT}, s{sOUT}, s{sT}')
    A(f's_lshr_b32 s{sOUT}, s{sOUT}, 1\ns_add_u32 s{sOUT}, s{sOUT}, {WS_Q}\ns_cmp_eq_u32 s{sMAT}, 2\ns_cselect_b32 s{sOUT}, s{sOUT}, s{sT}\ns_mov_b32 s{sT2}, {SEGB}\ns_cselect_b32 s{sOSTR}, 0x40000, s{sT2}')
    A(f's_mul_i32 s{sT}, s{sHALF}, s{sOSTR}\ns_add_u32 s{sOUT}, s{sOUT}, s{sT}\ns_lshl_b32 s{sOSTR}, s{sOSTR}, 1')
    A(f's_mul_i32 s{sX}, s{sHALF}, 40960')
    A(f's_lshl_b32 s{sFL}, s{sID}, 7\ns_add_u32 s{sFL}, s{sFL}, {FL_QKV}')
    if flags:
        A(f's_mov_b32 s{sT}, 0\n{L("iw")}:\nbuffer_load_dword v30, off, {DBG}, 0 offset:{DBG_INIT} sc1\ns_add_u32 s{sT}, s{sT}, 1\ns_cmp_gt_u32 s{sT}, 200000\ns_cbranch_scc1 L_end\ns_waitcnt vmcnt(0)\nv_and_b32 v30, 0xffff, v30\nv_cmp_gt_u32 vcc, 64, v30\ns_cbranch_vccnz {L("iw")}')
    A('s_waitcnt vmcnt(0)\ns_barrier')
    w_read(A,lambda n: ('a',4*n))
    A.srd(S_T0,36,2621440)
    A(f's_mul_i32 s{sM0}, s{sWAVE}, 10240')
    A('s_waitcnt lgkmcnt(0)\ns_barrier')
    def dma(ii): return [f's_add_u32 m0, s{sM0}, {ii*1024}', f'buffer_load_dwordx4 v{10+ii}, {T0}, s{sX} offen lds']
    def adv(): return [f's_add_u32 s{sX}, s{sX}, 81920', f's_min_u32 s{sX}, s{sX}, {2621440-40960}', f's_add_u32 s{sM0}, s{sM0}, 40960', f's_cmp_ge_u32 s{sM0}, 163840', f's_cselect_b32 s{sT}, 163840, 0', f's_sub_u32 s{sM0}, s{sM0}, s{sT}']
    for s_ in range(3):
        for ii in range(10):
            d=dma(ii); A(d[0]); A('s_nop 0'); A(d[1])
        for z in adv(): A(z)
    A(f's_mov_b32 s{sIT}, 0\ns_waitcnt vmcnt(20)')
    A(f's_cmp_eq_u32 s{sMAT}, 1\ns_cbranch_scc1 {L("v")}')
    XB=32; ACC=64; OUTR=80
    for var in ('k','v'):
        A(f'{L(var)}:')
        A(f's_barrier')
        lg=Q()
        def rd(kk,tt):
            b=XB+8*(kk%4)+4*tt
            A(f'ds_read_b128 v[{b}:{b+3}], v{20+(kk&3)} offset:{(kk>>2)*256+tt*20480}'); lg.push(f'{kk}_{tt}')
        for kk in range(3):
            for tt in range(2): rd(kk,tt)
        if flags:
            A(f's_cmp_lg_u32 s{sWAVE}, 0\ns_cbranch_scc1 {L(var+"nf")}\ns_sub_u32 s{sT}, s{sIT}, 3\ns_max_i32 s{sT}, s{sT}, 0\nv_mov_b32 v30, s{sT}\ns_mov_b64 exec, 1\nbuffer_store_dword v30, off, {WS}, s{sFL} sc1\ns_mov_b64 exec, -1\n{L(var+"nf")}:')
        side=[]
        for ii in range(10): side+=dma(ii)
        side+=adv()
        for kk in range(20):
            for n,(tt,T) in enumerate(((0,0),(0,1),(1,0),(1,1))):
                if T==0: A(f's_waitcnt lgkmcnt({lg.wait(f"{kk}_{tt}")})')
                x=f'v[{XB+8*(kk%4)+4*tt}:{XB+8*(kk%4)+4*tt+3}]'; w=f'a[{(kk*2+T)*4}:{(kk*2+T)*4+3}]'
                d=ACC+8*tt+4*T; c='0' if kk==0 else f'v[{d}:{d+3}]'
                A(f'v_mfma_f32_16x16x32_bf16 v[{d}:{d+3}], '+(f'{w}, {x}' if var=='k' else f'{x}, {w}')+f', {c}')
                if kk+3<20 and n in (0,2): rd(kk+3,n>>1)
                if n in (1,3) and side: A(side.pop(0))
        assert not side
        A(f's_add_u32 s{sIT}, s{sIT}, 1\ns_and_b32 s{sT}, s{sIT}, 3\ns_cmp_eq_u32 s{sT}, 0\ns_mov_b32 s{sT2}, 40960\ns_cselect_b32 s{sT}, {-3*40960}, s{sT2}')
        for k in range(4): A(f'v_add_u32 v{20+k}, s{sT}, v{20+k}')
        for o in range(2):
            for h in range(2):
                d=ACC+8*o+4*h if var=='k' else ACC+8*h+4*o
                cvt(A,OUTR+4*o+2*h,d,d+1); cvt(A,OUTR+4*o+2*h+1,d+2,d+3)
            A(f'buffer_store_dwordx4 v[{OUTR+4*o}:{OUTR+4*o+3}], v0, {WS}, s{sOUT} offen offset:{1024*o} sc1')
        A(f's_add_u32 s{sOUT}, s{sOUT}, s{sOSTR}\ns_cmp_lt_u32 s{sIT}, 3\ns_cbranch_scc1 {L(var+"e")}')
        A(f's_cmp_lt_u32 s{sIT}, 32\ns_waitcnt vmcnt(26)\ns_cbranch_scc1 {L(var)}\ns_branch {L("end")}')
        A(f'{L(var+"e")}:\ns_waitcnt vmcnt(22)\ns_branch {L(var)}')
    A(f'{L("end")}:\ns_waitcnt vmcnt(0)\ns_barrier')
    if flags:
        A(f's_cmp_lg_u32 s{sWAVE}, 0\ns_cbranch_scc1 {L("nf")}\nv_mov_b32 v30, 32\ns_mov_b64 exec, 1\nbuffer_store_dword v30, off, {WS}, s{sFL} sc1\ns_mov_b64 exec, -1\n{L("nf")}:')
```

```python
import sys
from common import *
import chain, qkv, att, s4, ma
NAME='concat_heads__memory_aug_recurrent_mem_tr__ssm_conv_s4__prompt'
def gen(diag=False, force_fill=0, stop=0, probe=1, **kw):
    A=Asm()
    sTEAM,sRANK=chain.sTEAM,chain.sRANK
    if diag: A('s_memrealtime s[100:101]')
    A('s_cmp_ge_u32 s2, 256\ns_cbranch_scc1 L_end')
    A('s_load_dwordx4 s[4:7], s[0:1], 136')
    A('s_getreg_b32 s23, hwreg(HW_REG_XCC_ID)\ns_and_b32 s23, s23, 15')
    if force_fill: A(f's_add_u32 s23, s23, s2\ns_lshr_b32 s24, s2, 3\ns_add_u32 s23, s23, s24\ns_and_b32 s23, s23, 15')
    A('v_lshrrev_b32 v1, 6, v0\nv_and_b32 v255, 63, v0')
    A(f's_lshl_b32 s24, s23, 6\ns_lshl_b32 s25, s23, 2\ns_add_u32 s25, s25, {DBG_XO}\ns_cmp_lt_u32 s23, 2\ns_cselect_b32 s24, s24, s25')
    A('v_readfirstlane_b32 s22, v1\nv_mov_b32 v2, 0\ns_waitcnt lgkmcnt(0)')
    A.srd(S_WS,6,WS_SIZE); A.srd(S_DBG,4,256)
    A.c('register on the counter of the die this workgroup runs on')
    A(f's_mov_b32 s{chain.sPOL}, 1\ns_cmp_lg_u32 s22, 1\ns_cbranch_scc1 L_nopr\ns_cmp_ge_u32 s23, 2\ns_cbranch_scc1 L_reg')
    A.c('which of two adjacent 8 KiB blocks answers first? (places the cross-die hand-off area; speed only)')
    A(f's_and_b32 s26, s2, 127\ns_lshl_b32 s26, s26, 14\ns_add_u32 s26, s26, {WS_AGR+6144}\ns_add_u32 s26, s6, s26\ns_addc_u32 s27, s7, 0')
    A('s_load_dword s28, s[26:27], 0 glc\ns_load_dword s29, s[26:27], 8192 glc\ns_waitcnt lgkmcnt(0)\ns_not_b32 s30, s28\ns_not_b32 s31, s29')
    if probe==0:
        A('s_load_dword s30, s[26:27], 0 glc\ns_load_dword s31, s[26:27], 8192 glc\ns_waitcnt lgkmcnt(1)\ns_cmp_eq_u32 s30, s28')
        A(f's_cselect_b32 s{chain.sPOL}, 1, 0x10001\ns_waitcnt lgkmcnt(0)\ns_branch L_reg')
    else:
        for k in range(2):
            A(f's_mov_b32 s{32+k}, 0\ns_load_dword s{30+k}, s[26:27], {8192*k} glc\nL_pr{k}:\ns_add_u32 s{32+k}, s{32+k}, 1\ns_cmp_gt_u32 s{32+k}, 1000\ns_cbranch_scc1 L_pre{k}\ns_cmp_lg_u32 s{30+k}, s{28+k}\ns_cbranch_scc1 L_pr{k}\nL_pre{k}:\ns_waitcnt lgkmcnt(0)')
        A(f's_cmp_le_u32 s32, s33\ns_cselect_b32 s{chain.sPOL}, 1, 0x10001\ns_branch L_reg')
    A(f'L_nopr:\ns_cmp_lg_u32 s22, 0\ns_cbranch_scc1 L_reg\ns_mov_b64 exec, 1\nv_mov_b32 v3, 1\nbuffer_atomic_add v3, off, {DBG}, s24 sc0 sc1\ns_waitcnt vmcnt(0)\nds_write_b32 v2, v3\ns_mov_b64 exec, -1\ns_waitcnt lgkmcnt(0)')
    A(f'L_reg:\ns_barrier\nds_read_b32 v3, v2\ns_waitcnt lgkmcnt(0)\nv_readfirstlane_b32 s{sRANK}, v3\ns_mov_b32 s{sTEAM}, s23')
    A(f's_cmp_ge_u32 s23, 2\ns_cbranch_scc1 L_other\ns_cmp_lt_u32 s{sRANK}, 32\ns_cbranch_scc1 L_chain')
    A('L_other:')
    A.c('wait until all 256 workgroups have registered, then number the remaining ones')
    A(f'v_lshlrev_b32 v4, 2, v255\nv_add_u32 v4, {DBG_XO}, v4\nv_lshlrev_b32 v5, 6, v255\nv_cmp_gt_u32 vcc, 2, v255\ns_mov_b32 s26, 0\ns_nop 0\nv_cndmask_b32 v4, v4, v5, vcc')
    A(f'L_cnt:\ns_mov_b64 exec, 0xffff\nbuffer_load_dword v5, v4, {DBG}, 0 offen sc1\ns_add_u32 s26, s26, 1\ns_cmp_gt_u32 s26, 200000\ns_cbranch_scc1 L_end\ns_waitcnt vmcnt(0)\ns_mov_b64 exec, -1')
    A('s_mov_b32 s27, 0\ns_mov_b32 s28, 0')
    for x in range(16):
        A(f'v_readlane_b32 s29, v5, {x}\ns_add_u32 s27, s27, s29')
        if x<2: A(f's_min_u32 s{30+x}, s29, 32\ns_sub_u32 s29, s29, s{30+x}')
        A(f's_cmp_gt_u32 s23, {x}\ns_cselect_b32 s29, s29, 0\ns_add_u32 s28, s28, s29')
    A('s_cmp_ge_u32 s27, 256\ns_cbranch_scc1 L_cntok\ns_sleep 4\ns_branch L_cnt\nL_cntok:')
    A(f's_cmp_lt_u32 s23, 2\ns_cselect_b32 s29, 32, 0\ns_sub_u32 s29, s{sRANK}, s29\ns_add_u32 s28, s28, s29')
    for t in range(2):
        A(f's_add_u32 s{sRANK}, s{30+t}, s28\ns_mov_b32 s{sTEAM}, {t}\ns_cmp_lt_u32 s{sRANK}, 32\ns_cbranch_scc1 L_chain\ns_sub_u32 s28, s{sRANK}, 32')
    A('s_cmp_ge_u32 s28, 192\ns_cbranch_scc1 L_end\ns_mov_b32 s21, s28')
    A('s_and_b32 s20, s21, 1\ns_mul_i32 s20, s20, 96\ns_lshr_b32 s23, s21, 1\ns_add_u32 s20, s20, s23\ns_barrier')
    def dg(k):
        if diag: A(f's_memrealtime s[{90+2*k}:{91+2*k}]')
    dg(0)
    qkv.qkv_code(A,flags=True)
    dg(1)
    if stop==1: A('s_branch L_fin')
    A('s_cmp_lt_u32 s21, 64\ns_cbranch_scc1 L_ma')
    A('s_and_b32 s23, s21, 31\ns_lshr_b32 s24, s21, 5\ns_sub_u32 s24, s24, 2\ns_cmp_lt_u32 s23, 20\ns_cbranch_scc1 L_out')
    A('s_mul_i32 s24, s24, 40\ns_add_u32 s20, s24, s23\ns_sub_u32 s20, s20, 20\ns_add_u32 s23, s24, 40\nL_s4:')
    s4.s4_code(A,idreg=20)
    A('s_add_u32 s20, s20, 12\ns_cmp_lt_u32 s20, s23\ns_cbranch_scc1 L_s4')
    A('s_branch L_fin\nL_ma:')
    ma.ma_code(A,fail='L_fin',polfix=kw.get('polfix'))
    A('s_branch L_fin\nL_out:\ns_mul_i32 s24, s24, 20\ns_add_u32 s20, s24, s23')
    att.out_code(A,flags=True,fail='L_fin',nset=4)
    A('s_branch L_fin\nL_chain:')
    dg(0)
    chain.chain_code(A,fused=True,diag=diag,**kw)
    if diag: A(f's_lshl_b32 s23, s{sTEAM}, 5\ns_add_u32 s21, s{sRANK}, s23\ns_add_u32 s21, s21, 192')
    A('L_fin:')
    if diag:
        dg(3)
        A('s_mov_b64 exec, -1\ns_waitcnt vmcnt(0) lgkmcnt(0)')
        A('v_mov_b32 v16, s100\nv_mov_b32 v17, s90\nv_mov_b32 v18, s92\nv_mov_b32 v19, s94\nv_mov_b32 v20, s96\nv_mov_b32 v21, s34\nv_mov_b32 v22, s2\nv_mov_b32 v23, s98')
        A(f's_lshl_b32 s3, s21, 2\ns_add_u32 s3, s3, s22\ns_lshl_b32 s3, s3, 5\ns_add_u32 s3, s3, {WS_DIAG}\ns_mov_b64 exec, 1')
        A(f'buffer_store_dwordx4 v[16:19], off, {WS}, s3\nbuffer_store_dwordx4 v[20:23], off, {WS}, s3 offset:16')
        if kw.get('trace'):
            A(f's_cmp_lt_u32 s21, 192\ns_cbranch_scc1 L_end\ns_mov_b64 exec, -1\ns_barrier\nds_read_b128 v[16:19], v0 offset:7168\ns_lshl_b32 s3, s21, 10\ns_add_u32 s3, s3, {WS_DIAG+0x100000}\ns_waitcnt lgkmcnt(0)\nbuffer_store_dwordx4 v[16:19], v0, {WS}, s3 offen')
    A('L_end:\ns_endpgm')
    hdr=''.join(l for l in open(f'cdna_kernels/{NAME}.s.ref') if l.startswith(';') and '@launch' not in l)
    return hdr+wrap(NAME+'_kernel',A.text(),256,256,163840,vgpr=512,accum=256)
if __name__=='__main__':
    kw=eval(sys.argv[2]) if len(sys.argv)>2 else {}
    open(sys.argv[1],'w').write(gen(**kw))
```

```python
import sys
from common import *
import chain, qkv, att, s4, ma
NAME='concat_heads__memory_aug_recurrent_mem_tr__ssm_conv_s4__prompt'
def gen(diag=False, force_fill=0, stop=0, probe=1, **kw):
    A=Asm()
    sTEAM,sRANK=chain.sTEAM,chain.sRANK
    if diag: A('s_memrealtime s[100:101]')
    A('s_cmp_ge_u32 s2, 256\ns_cbranch_scc1 L_end')
    A('s_load_dwordx4 s[4:7], s[0:1], 136')
    A('s_getreg_b32 s23, hwreg(HW_REG_XCC_ID)\ns_and_b32 s23, s23, 15')
    if force_fill: A(f's_add_u32 s23, s23, s2\ns_lshr_b32 s24, s2, 3\ns_add_u32 s23, s23, s24\ns_and_b32 s23, s23, 15')
    A('v_lshrrev_b32 v1, 6, v0\nv_and_b32 v255, 63, v0')
    A(f's_lshl_b32 s24, s23, 6\ns_lshl_b32 s25, s23, 2\ns_add_u32 s25, s25, {DBG_XO}\ns_cmp_lt_u32 s23, 2\ns_cselect_b32 s24, s24, s25')
    A('v_readfirstlane_b32 s22, v1\nv_mov_b32 v2, 0\ns_waitcnt lgkmcnt(0)')
    A.srd(S_WS,6,WS_SIZE); A.srd(S_DBG,4,256)
    A.c('register on the counter of the die this workgroup runs on')
    A(f's_mov_b32 s{chain.sPOL}, 1\ns_cmp_lg_u32 s22, 1\ns_cbranch_scc1 L_nopr\ns_cmp_ge_u32 s23, 2\ns_cbranch_scc1 L_reg')
    A.c('which of two adjacent 8 KiB blocks answers first? (places the cross-die hand-off area; speed only)')
    A(f's_and_b32 s26, s2, 127\ns_lshl_b32 s26, s26, 14\ns_add_u32 s26, s26, {WS_AGR+6144}\ns_add_u32 s26, s6, s26\ns_addc_u32 s27, s7, 0')
    A('s_load_dword s28, s[26:27], 0 glc\ns_load_dword s29, s[26:27], 8192 glc\ns_waitcnt lgkmcnt(0)\ns_not_b32 s30, s28\ns_not_b32 s31, s29')
    if probe==0:
        A('s_load_dword s30, s[26:27], 0 glc\ns_load_dword s31, s[26:27], 8192 glc\ns_waitcnt lgkmcnt(1)\ns_cmp_eq_u32 s30, s28')
        A(f's_cselect_b32 s{chain.sPOL}, 1, 0x10001\ns_waitcnt lgkmcnt(0)\ns_branch L_reg')
    else:
        for k in range(2):
            A(f's_mov_b32 s{32+k}, 0\ns_load_dword s{30+k}, s[26:27], {8192*k} glc\nL_pr{k}:\ns_add_u32 s{32+k}, s{32+k}, 1\ns_cmp_gt_u32 s{32+k}, 1000\ns_cbranch_scc1 L_pre{k}\ns_cmp_lg_u32 s{30+k}, s{28+k}\ns_cbranch_scc1 L_pr{k}\nL_pre{k}:\ns_waitcnt lgkmcnt(0)')
        A(f's_cmp_le_u32 s32, s33\ns_cselect_b32 s{chain.sPOL}, 1, 0x10001\ns_branch L_reg')
    A(f'L_nopr:\ns_cmp_lg_u32 s22, 0\ns_cbranch_scc1 L_reg\ns_mov_b64 exec, 1\nv_mov_b32 v3, 1\nbuffer_atomic_add v3, off, {DBG}, s24 sc0 sc1\ns_waitcnt vmcnt(0)\nds_write_b32 v2, v3\ns_mov_b64 exec, -1\ns_waitcnt lgkmcnt(0)')
    A(f'L_reg:\ns_barrier\nds_read_b32 v3, v2\ns_waitcnt lgkmcnt(0)\nv_readfirstlane_b32 s{sRANK}, v3\ns_mov_b32 s{sTEAM}, s23')
    A(f's_cmp_ge_u32 s23, 2\ns_cbranch_scc1 L_other\ns_cmp_lt_u32 s{sRANK}, 32\ns_cbranch_scc1 L_chain')
    A('L_other:')
    A.c('wait until all 256 workgroups have registered, then number the remaining ones')
    A(f'v_lshlrev_b32 v4, 2, v255\nv_add_u32 v4, {DBG_XO}, v4\nv_lshlrev_b32 v5, 6, v255\nv_cmp_gt_u32 vcc, 2, v255\ns_mov_b32 s26, 0\ns_nop 0\nv_cndmask_b32 v4, v4, v5, vcc')
    A(f'L_cnt:\ns_mov_b64 exec, 0xffff\nbuffer_load_dword v5, v4, {DBG}, 0 offen sc1\ns_add_u32 s26, s26, 1\ns_cmp_gt_u32 s26, 200000\ns_cbranch_scc1 L_end\ns_waitcnt vmcnt(0)\ns_mov_b64 exec, -1')
    A('s_mov_b32 s27, 0\ns_mov_b32 s28, 0')
    for x in range(16):
        A(f'v_readlane_b32 s29, v5, {x}\ns_add_u32 s27, s27, s29')
        if x<2: A(f's_min_u32 s{30+x}, s29, 32\ns_sub_u32 s29, s29, s{30+x}')
        A(f's_cmp_gt_u32 s23, {x}\ns_cselect_b32 s29, s29, 0\ns_add_u32 s28, s28, s29')
    A('s_cmp_ge_u32 s27, 256\ns_cbranch_scc1 L_cntok\ns_sleep 4\ns_branch L_cnt\nL_cntok:')
    A(f's_cmp_lt_u32 s23, 2\ns_cselect_b32 s29, 32, 0\ns_sub_u32 s29, s{sRANK}, s29\ns_add_u32 s28, s28, s29')
    for t in range(2):
        A(f's_add_u32 s{sRANK}, s{30+t}, s28\ns_mov_b32 s{sTEAM}, {t}\ns_cmp_lt_u32 s{sRANK}, 32\ns_cbranch_scc1 L_chain\ns_sub_u32 s28, s{sRANK}, 32')
    A('s_cmp_ge_u32 s28, 192\ns_cbranch_scc1 L_end\ns_mov_b32 s21, s28')
    A('s_and_b32 s20, s21, 1\ns_mul_i32 s20, s20, 96\ns_lshr_b32 s23, s21, 1\ns_add_u32 s20, s20, s23\ns_barrier')
    def dg(k):
        if diag: A(f's_memrealtime s[{90+2*k}:{91+2*k}]')
    dg(0)
    qkv.qkv_code(A,flags=True)
    dg(1)
    if stop==1: A('s_branch L_fin')
    A('s_cmp_lt_u32 s21, 64\ns_cbranch_scc1 L_ma')
    A('s_and_b32 s23, s21, 31\ns_lshr_b32 s24, s21, 5\ns_sub_u32 s24, s24, 2\ns_cmp_lt_u32 s23, 20\ns_cbranch_scc1 L_out')
    A('s_mul_i32 s24, s24, 40\ns_add_u32 s20, s24, s23\ns_sub_u32 s20, s20, 20\ns_add_u32 s23, s24, 40\nL_s4:')
    s4.s4_code(A,idreg=20)
    A('s_add_u32 s20, s20, 12\ns_cmp_lt_u32 s20, s23\ns_cbranch_scc1 L_s4')
    A('s_branch L_fin\nL_ma:')
    ma.ma_code(A,fail='L_fin',polfix=kw.get('polfix'))
    A('s_branch L_fin\nL_out:\ns_mul_i32 s24, s24, 20\ns_add_u32 s20, s24, s23')
    att.out_code(A,flags=True,fail='L_fin',nset=4)
    A('s_branch L_fin\nL_chain:')
    dg(0)
    chain.chain_code(A,fused=True,diag=diag,**kw)
    if diag: A(f's_lshl_b32 s23, s{sTEAM}, 5\ns_add_u32 s21, s{sRANK}, s23\ns_add_u32 s21, s21, 192')
    A('L_fin:')
    if diag:
        dg(3)
        A('s_mov_b64 exec, -1\ns_waitcnt vmcnt(0) lgkmcnt(0)')
        A('v_mov_b32 v16, s100\nv_mov_b32 v17, s90\nv_mov_b32 v18, s92\nv_mov_b32 v19, s94\nv_mov_b32 v20, s96\nv_mov_b32 v21, s34\nv_mov_b32 v22, s2\nv_mov_b32 v23, s98')
        A(f's_lshl_b32 s3, s21, 2\ns_add_u32 s3, s3, s22\ns_lshl_b32 s3, s3, 5\ns_add_u32 s3, s3, {WS_DIAG}\ns_mov_b64 exec, 1')
        A(f'buffer_store_dwordx4 v[16:19], off, {WS}, s3\nbuffer_store_dwordx4 v[20:23], off, {WS}, s3 offset:16')
        if diag==2:
            A('s_load_dwordx2 s[4:5], s[0:1], 136\ns_waitcnt lgkmcnt(0)'); A.srd(S_DBG,4,256)
            A(f'v_not_b32 v16, v16\nbuffer_atomic_umax v16, off, {DBG}, 0 offset:12\nbuffer_atomic_umax v20, off, {DBG}, 0 offset:24\nv_mov_b32 v24, s8\nbuffer_store_dword v24, off, {DBG}, 0 offset:4')
            A(f's_cmp_lt_u32 s21, 192\ns_cbranch_scc1 L_dw\nbuffer_store_dword v23, off, {DBG}, 0 offset:8\nbuffer_atomic_umax v19, off, {DBG}, 0 offset:16\nbuffer_atomic_umax v20, off, {DBG}, 0 offset:20\nbuffer_atomic_umax v17, off, {DBG}, 0 offset:36\nbuffer_atomic_umax v21, off, {DBG}, 0 offset:40\ns_branch L_end')
            A(f'L_dw:\nbuffer_atomic_umax v18, off, {DBG}, 0 offset:28\nbuffer_atomic_umax v17, off, {DBG}, 0 offset:32')
        if kw.get('trace'):
            A(f's_cmp_lt_u32 s21, 192\ns_cbranch_scc1 L_end\ns_mov_b64 exec, -1\ns_barrier\nds_read_b128 v[16:19], v0 offset:7168\ns_lshl_b32 s3, s21, 10\ns_add_u32 s3, s3, {WS_DIAG+0x100000}\ns_waitcnt lgkmcnt(0)\nbuffer_store_dwordx4 v[16:19], v0, {WS}, s3 offen')
    A('L_end:\ns_endpgm')
    hdr=''.join(l for l in open(f'cdna_kernels/{NAME}.s.ref') if l.startswith(';') and '@launch' not in l)
    return hdr+wrap(NAME+'_kernel',A.text(),256,256,163840,vgpr=512,accum=256)
if __name__=='__main__':
    kw=eval(sys.argv[2]) if len(sys.argv)>2 else {}
    open(sys.argv[1],'w').write(gen(**kw))
```

```python
from asmlib import *
from layout import *

class Q:
    def __init__(s): s.q=[]
    def push(s,name): s.q.append(name)
    def wait(s,name):
        i=max(k for k,n in enumerate(s.q) if n==name)
        n=len(s.q)-1-i
        s.q=s.q[i+1:]
        return n
    def has(s,name): return name in s.q

S_WS=8
S_T0=12
S_DBG=16
sTEAM,sRANK,sWAVE=20,21,22
sAGL,sAGL4,sAGR,sAGR4,sPUBR,sRING,sRINGB,sKV,sTOUCH,sINB,sSTEP,sTMO=23,24,25,26,27,28,29,30,31,32,33,34
sRINGX,sRED,sC,sT,sT2,sT3,sINBX=35,36,37,38,39,40,41
sM3,sMC=42,44
sPOL=46; sRDY=47; sW4=48; sFLG=49; sFB=84; sFV=86
COPY2=0x400000
CTMO=400000
vL16,vIDX,vRSA,vRSC,vPUB,vTCH,vSW,vPUBR,vOW,vWB,vID=0,1,2,3,4,5,6,7,8,9,10
vT0,vT1,vT2,vT3=12,13,14,15
vA=16; vACC=36; vST=60; vKX=84; vVX=92; vSEL=100; vW=104
LDS_S=0; LDS_T0=4096; LDS_O=5120; LDS_W=8192; LDS_WW=38*1024
LDS_UNITS=[('v',0),('v',1),('v',2),('v',3),('v',4),('q',1),('q',5),('q',7),('q',9)]
HALF=('q',6)
def unit_regs():
    m={}; pool=[('a',i*8) for i in range(32)]+[('v',vW+i*8) for i in range(19)]
    it=iter(pool)
    for kind,n in (('q',10),('k',10),('v',10),('o',5)):
        for f in range(n):
            for t in range(2):
                if (kind,f) in LDS_UNITS or ((kind,f)==HALF and t==0): continue
                m[(kind,f,t)]=next(it)
    assert next(it,None) is None
    return m
UR=unit_regs()
def R(x,n,off=0): return f'{x[0]}[{x[1]+off}:{x[1]+off+n-1}]'
PERM=[2,3,0,1,4]
AREG={0:vA+16,1:vKX,2:vKX+4,3:vVX,4:vVX+4,5:vA,6:vA+4,7:vA+8,8:vA+12,9:vA+16}

def arm_code(A,sTm,sRk,tmps,vL,vD,pq=None):
    t1,t2,t3=tmps; ws=f's[{S_WS}:{S_WS+3}]'
    def st(off=0):
        A(f'buffer_store_dwordx4 v[{vD}:{vD+3}], v{vL}, {ws}, s{t3} offen offset:{off} sc1')
        if pq: pq.push('arm')
    def half(): st(); st(1024); A('s_mov_b32 exec_hi, 0'); st(2048); A('s_mov_b32 exec_hi, -1')
    for r in range(4): A(f'v_mov_b32 v{vD+r}, -1')
    A(f's_lshl_b32 s{t1}, s{sTm}, 5\ns_add_u32 s{t1}, s{t1}, s{sRk}\ns_lshl_b32 s{t1}, s{t1}, 2\ns_add_u32 s{t1}, s{t1}, s{sWAVE}')
    A(f's_lshl_b32 s{t3}, s{t1}, 13\ns_add_u32 s{t3}, s{t3}, {WS_AGR}')
    for k in range(4): st(1024*k)
    A(f's_add_u32 s{t3}, s{t3}, 4096'); st()
    A(f's_mul_i32 s{t3}, s{t1}, 2560\ns_add_u32 s{t3}, s{t3}, {WS_RING}'); half()
    A(f's_bfe_u32 s{t2}, s{t1}, 0x60001\ns_mul_i32 s{t3}, s{t2}, {SEGB}\ns_and_b32 s{t2}, s{t1}, 1\ns_mul_i32 s{t2}, s{t2}, 2560\ns_add_u32 s{t3}, s{t3}, s{t2}\ns_lshl_b32 s{t2}, s{sTm}, 13\ns_add_u32 s{t3}, s{t3}, s{t2}\ns_add_u32 s{t3}, s{t3}, {AGL_OFF}'); half()
    A('s_nop 0')
    for r in range(4): A(f'v_mov_b32 v{vD+r}, 0')
    A(f's_lshl_b32 s{t3}, s{t1}, 8\ns_add_u32 s{t3}, s{t3}, {WS_FLAG}\ns_mov_b64 exec, 0xffff'); st(); A('s_mov_b64 exec, -1')

def chain_pre(A):
    A('s_load_dwordx2 s[58:59], s[0:1], 8\ns_load_dwordx8 s[60:67], s[0:1], 16')
    A('v_and_b32 v20, 63, v0\nv_lshrrev_b32 v21, 6, v0\nv_and_b32 v22, 15, v20\nv_lshrrev_b32 v23, 4, v20')
    A(f's_mul_i32 s57, s{sWAVE}, {LDS_WW}\ns_add_u32 s57, s57, {LDS_W}')
    A('v_and_b32 v24, 1, v23\nv_lshrrev_b32 v25, 1, v23\nv_lshlrev_b32 v26, 1, v23\nv_xor_b32 v26, v26, v22')
    A('v_lshrrev_b32 v29, 1, v21\nv_and_b32 v30, 1, v21')
    A('v_lshl_add_u32 v31, v25, 4, v24\nv_lshl_add_u32 v31, v29, 5, v31\nv_lshl_add_u32 v31, v30, 3, v31\nv_lshlrev_b32 v31, 13, v31')
    A('v_lshl_add_u32 v32, v25, 3, v24\nv_lshl_add_u32 v32, v21, 4, v32\nv_lshlrev_b32 v32, 13, v32')
    A('v_lshl_add_u32 v33, v25, 5, v24\nv_lshl_add_u32 v33, v21, 2, v33\nv_mul_u32_u24 v33, 1280, v33')
    for var in range(2):
        if var: A('v_xor_b32 v26, 8, v26')
        A(f'v_lshl_add_u32 v{60+var}, v26, 4, v31\nv_lshl_add_u32 v{62+var}, v26, 4, v32\nv_lshl_add_u32 v{64+var}, v26, 4, v33')
        A(f'v_bfe_u32 v27, v26, 1, 1\nv_mul_u32_u24 v27, {64*1280}, v27\nv_add_u32 v27, v27, v33\nv_lshrrev_b32 v34, 2, v26\nv_lshl_add_u32 v27, v34, 5, v27\nv_and_b32 v34, 1, v26\nv_lshl_add_u32 v{66+var}, v34, 4, v27')
    A('v_bfe_u32 v26, v20, 2, 2\nv_lshl_add_u32 v27, v24, 2, v26\nv_lshlrev_b32 v27, 1, v27\nv_bfe_u32 v29, v20, 1, 1\nv_lshl_add_u32 v29, v21, 2, v29\nv_xor_b32 v29, v29, v27\nv_lshlrev_b32 v29, 4, v29')
    A(f'v_lshl_add_u32 v26, v24, 3, v26\nv_lshl_add_u32 v29, v26, 8, v29\nv_and_b32 v26, 1, v20\nv_lshl_add_u32 v29, v26, 3, v29\nv_mul_u32_u24 v26, {LDS_WW}, v25\nv_add_u32 v26, {LDS_W}, v26')
    A(f'v_add_u32 v68, v29, v26\nv_xor_b32 v29, 32, v29\nv_add_u32 v69, v29, v26\nv_add_u32 v70, {2*LDS_WW}, v68\nv_add_u32 v71, {2*LDS_WW}, v69')

def chain_code(A, fused=False, stamps=0, nsteps=63, depth=3, polfix=None, diag=False, copies=1, armat=0, lorder='kvqo', ctouch=5, tch=0, tch0=1, **kw):
    L=lambda n: f'L_{n}'
    ws=f's[{S_WS}:{S_WS+3}]'
    A(f's_lshl_b32 s68, s{sRANK}, 8\ns_mul_i32 s{sT2}, s{sTEAM}, {320*8192}\ns_add_u32 s69, s68, s{sT2}\ns_sub_u32 s70, s68, s{sT2}\ns_add_u32 s70, s70, {320*8192}')
    A(f's_mul_i32 s71, s{sRANK}, {128*1280}\ns_mul_i32 s{sT2}, s{sTEAM}, 640\ns_add_u32 s71, s71, s{sT2}')
    A('s_waitcnt lgkmcnt(0)')
    allu=[(k,f) for k in lorder for f in range(5 if k=='o' else 10)]
    units=[u for u in allu if u not in LDS_UNITS]+sorted(LDS_UNITS)
    NS=9; pq=Q(); cur=[None]
    def setsrd(kind):
        if cur[0]!=kind:
            cur[0]=kind
            A.srd(S_T0,{'q':60,'k':62,'v':64,'o':66,'m':58}[kind],10240 if kind=='m' else 5242880)
    def issue(i):
        kind,f=units[i]; setsrd(kind)
        sl=i%NS
        for io in range(4):
            if kind!='o':
                base='s69' if f<5 else 's70'
                isC=(f%5==4)
                off_=(64*PERM[f%5]+2*io)*8192; vo=62 if isC else 60
            else:
                base='s71'; e=16*(io>>1)+2*(io&1)
                if f<4: off_=(64*(f&1)+e)*1280+256*(f>>1); vo=64
                else: off_=e*1280+512; vo=66
            A(f's_add_u32 m0, s57, {sl*4096+io*1024}\ns_add_u32 s{sT2}, {base}, {off_}')
            A(f'buffer_load_dwordx4 v{vo+(io>>1)}, s[{S_T0}:{S_T0+3}], s{sT2} offen lds'); pq.push(f'u{i}')
    pb={'q':60,'k':62,'v':64}
    def rowtouch(i):
        if not tch or i>=len(units) or units[i][0]=='o': return
        kind,f=units[i]
        A(f'v_add_u32 v80, {64*PERM[f%5]*8192}, v{81 if f<5 else 82}\nglobal_load_dword v83, v80, s[{pb[kind]}:{pb[kind]+1}]'); pq.push('rt')
    for i in range(depth): issue(i)
    if tch:
        A(f's_lshl_b32 s{sT}, s{sRANK}, 2\ns_add_u32 s{sT}, s{sT}, s{sWAVE}\ns_lshl_b32 s{sT}, s{sT}, 12\ns_mul_i32 s{sT2}, s{sTEAM}, {320*8192}\ns_add_u32 s{sT3}, s{sT}, s{sT2}\nv_lshl_add_u32 v81, v20, 6, s{sT3}')
        A(f's_sub_u32 s{sT3}, s{sT}, s{sT2}\ns_add_u32 s{sT3}, s{sT3}, {320*8192}\nv_lshl_add_u32 v82, v20, 6, s{sT3}')
        for i in range(depth+tch0,depth+tch): rowtouch(i)
    A(f'v_lshlrev_b32 v{vL16}, 4, v20')
    A(f's_mov_b32 s{sM3}, 0x33333333\ns_mov_b32 s{sM3+1}, 0x33333333\ns_mov_b32 s{sMC}, 0xcccccccc\ns_mov_b32 s{sMC+1}, 0xcccccccc')
    A(f'v_mov_b32 v{vIDX}, 0x4444\nv_mov_b32 v24, 0xeeee\nv_cndmask_b32 v{vIDX}, v{vIDX}, v24, s[{sMC}:{sMC+1}]')
    A(f's_lshl_b32 s{sT}, s{sRANK}, 6')
    A(f'v_lshrrev_b32 v24, 3, v20\nv_lshl_add_u32 v24, v21, 3, v24\nv_lshlrev_b32 v24, 11, v24\nv_and_b32 v25, 7, v20\nv_lshl_add_u32 v24, v25, 3, v24\nv_add_u32 v{vRSA}, s{sT}, v24')
    A(f'v_lshl_add_u32 v24, v21, 2, v23\nv_add_u32 v24, 64, v24\nv_lshlrev_b32 v24, 11, v24\nv_lshl_add_u32 v24, v22, 2, v24\nv_add_u32 v{vRSC}, s{sT}, v24')
    A(f's_lshl_b32 s{sT}, s{sWAVE}, 5\ns_add_u32 s{sT}, s{sT}, s{sRANK}')
    A(f's_cmp_lt_u32 s{sT}, 80\ns_cselect_b32 s{sRED}, 1, 0\ns_cselect_b32 s{sT}, s{sT}, 0\ns_lshl_b32 s{sINB}, s{sT}, 11')
    A('v_and_b32 v26, 3, v22\nv_lshrrev_b32 v27, 1, v23\nv_and_b32 v29, 1, v23')
    A(f's_cmp_lt_u32 s{sWAVE}, 2\ns_cbranch_scc0 {L("segC")}')
    A(f's_lshr_b32 s50, s{sRANK}, 3\ns_lshr_b32 s51, s{sRANK}, 1\ns_and_b32 s51, s51, 3\ns_and_b32 s55, s{sRANK}, 1\ns_and_b32 s52, s50, 1\ns_lshl_b32 s52, s52, 1\ns_add_u32 s52, s52, s55')
    A(f's_lshr_b32 s53, s50, 1\ns_lshl_b32 s56, s{sWAVE}, 1\ns_add_u32 s53, s53, s56')
    A(f's_lshl_b32 s54, s{sWAVE}, 7\ns_lshl_b32 s56, s50, 5\ns_add_u32 s54, s54, s56\ns_lshl_b32 s56, s55, 3\ns_add_u32 s54, s54, s56')
    A('v_lshl_add_u32 v28, v29, 3, v26\nv_lshlrev_b32 v28, 1, v28')
    A('v_lshl_add_u32 v24, v29, 1, v27\nv_lshlrev_b32 v24, 4, v24\nv_lshl_add_u32 v24, v26, 2, v24')
    A('v_and_b32 v30, 1, v22\nv_bfe_u32 v31, v22, 2, 1\nv_lshl_add_u32 v30, v30, 1, v31')
    A(f's_branch {L("segD")}\n{L("segC")}:')
    A(f's_lshr_b32 s50, s{sRANK}, 2\ns_and_b32 s50, s50, 3\ns_and_b32 s51, s{sRANK}, 3\ns_mov_b32 s52, s50\ns_mov_b32 s53, 4\ns_lshl_b32 s54, s50, 4\ns_add_u32 s54, s54, 256')
    A('v_lshl_add_u32 v28, v26, 1, v29\nv_lshlrev_b32 v28, 1, v28')
    A('v_lshrrev_b32 v24, 1, v26\nv_lshl_add_u32 v24, v24, 1, v27\nv_lshlrev_b32 v24, 4, v24\nv_and_b32 v25, 1, v26\nv_lshl_add_u32 v24, v25, 3, v24\nv_lshl_add_u32 v24, v29, 2, v24')
    A('v_and_b32 v30, 1, v22\nv_bfe_u32 v31, v22, 2, 1\nv_lshl_add_u32 v30, v31, 1, v30')
    A(f'{L("segD")}:')
    A(f's_lshl_b32 s53, s53, 10\ns_lshl_b32 s52, s52, 8\ns_add_u32 s53, s53, s52\ns_lshl_b32 s56, s51, 6\ns_add_u32 s53, s53, s56')
    A(f'v_add_u32 v24, s53, v24\nv_cmp_gt_u32 vcc, 4, v22\nv_mov_b32 v25, {hex(OOB)}\nv_add_u32 v31, {COPY2}, v24\nv_cndmask_b32 v{vPUB}, v25, v24, vcc\nv_cndmask_b32 v31, v31, v24, vcc')
    A(f'v_cmp_gt_u32 vcc, {8 if copies>1 else 4}, v22\ns_nop 1\nv_cndmask_b32 v{vPUBR}, v25, v31, vcc')
    A(f's_mul_i32 s56, s{sTEAM}, 320\ns_add_u32 s54, s54, s56\ns_mul_i32 s56, s51, 1280\ns_add_u32 s54, s54, s56')
    A('v_mul_u32_u24 v24, 640, v27\nv_add3_u32 v28, v24, v28, s54\nv_lshlrev_b32 v28, 1, v28')
    A(f's_lshl_b32 s{sT2}, s{sRANK}, 14\ns_lshl_b32 s{sT3}, s{sWAVE}, 12\ns_add_u32 s{sKV}, s{sT2}, s{sT3}')
    A(f'v_lshlrev_b32 v24, 7, v20\nv_add_u32 v26, s{sKV}, v24')
    A(f's_lshl_b32 s{sT2}, s{sTEAM}, 13\ns_add_u32 s{sAGL}, s{sT2}, {AGL_OFF}\ns_mul_i32 s{sT3}, s{sWAVE}, 1280\ns_add_u32 s{sT2}, s{sAGL}, s{sT3}\ns_sub_u32 s{sT2}, s{sT2}, 4096')
    A(f'v_add_u32 v24, s{sT2}, v24\nv_cmp_gt_u32 vcc, 32, v20\ns_nop 1\nv_cndmask_b32 v24, v24, v26, vcc\nv_cmp_gt_u32 vcc, 42, v20\ns_nop 1\nv_cndmask_b32 v{vTCH}, v25, v24, vcc')
    A(f'v_lshl_add_u32 v{vSW}, v21, 10, v{vL16}\ns_lshl_b32 s{sW4}, s{sWAVE}, 2')
    A(f'v_lshrrev_b32 v24, 1, v21\nv_lshlrev_b32 v24, 10, v24\nv_and_b32 v25, 1, v21\nv_lshl_add_u32 v24, v25, 5, v24\nv_add_u32 v24, {LDS_O}, v24\nv_add_u32 v{vOW}, v24, v{vL16}')
    A(f'v_add_u32 v{vWB}, s57, v{vL16}')
    A('v_lshrrev_b32 v24, 3, v22\nv_lshlrev_b32 v24, 4, v24\nv_mov_b32 v25, 0x3f80\nv_lshlrev_b32 v24, v24, v25\nv_and_b32 v26, 2, v22\nv_lshl_add_u32 v26, v26, 2, v30')
    for dw in range(4): A(f'v_cmp_eq_u32 vcc, {dw}, v26\ns_nop 1\nv_cndmask_b32 v{vSEL+dw}, 0, v24, vcc')
    A('v_and_b32 v24, 1, v22\nv_lshlrev_b32 v24, 4, v24\nv_lshlrev_b32 v24, v24, v25\nv_lshrrev_b32 v26, 1, v22\nv_lshlrev_b32 v27, 1, v23\nv_sub_u32 v26, v26, v27')
    for x in range(2): A(f'v_cmp_eq_u32 vcc, {x}, v26\ns_nop 1\nv_cndmask_b32 v{vID+x}, 0, v24, vcc')
    A(f's_add_u32 s{sAGL4}, s{sAGL}, 4096')
    A(f's_lshl_b32 s{sT2}, s{sTEAM}, 20\ns_add_u32 s{sPUBR}, s{sT2}, {WS_AGR}')
    A(f's_mul_i32 s{sT2}, s{sTEAM}, {2*RING_SLOT}\ns_add_u32 s{sRING}, s{sT2}, {WS_RING}\ns_add_u32 s{sT3}, s{sRING}, {RING_SLOT}\ns_xor_b32 s{sRINGX}, s{sRING}, s{sT3}')
    A(f's_add_u32 s{sT2}, s{sINB}, s{sRING}\ns_add_u32 s{sINB}, s{sINB}, s{sT3}\ns_xor_b32 s{sINBX}, s{sINB}, s{sT2}')
    A(f's_mov_b32 s{sTOUCH}, {SEGB}\ns_mov_b32 s{sSTEP}, 0\ns_mov_b32 s{sTMO}, 0\ns_mov_b32 s{sRDY}, 0')
    A(f's_mov_b32 s{sC}, {hex(0x3e0293ee)}')
    A(f's_lshl_b32 s{sT2}, s{sTEAM}, 5\ns_add_u32 s{sT}, s{sT2}, s{sRANK}\ns_lshl_b32 s{sFLG}, s{sT}, 7\ns_add_u32 s{sFLG}, s{sFLG}, {FL_KVM}')
    if not fused: arm_code(A,sTEAM,sRANK,(sT,sT2,sT3),vL16,36,pq)
    setsrd('m')
    A(f'buffer_load_dword v35, v28, s[{S_T0}:{S_T0+3}], 0 offen'); pq.push('arm')
    dbg=f's[{S_DBG}:{S_DBG+3}]'
    tmo=f's_add_u32 s{sTMO}, s{sTMO}, 1\ns_cmp_gt_u32 s{sTMO}, {CTMO}\ns_cbranch_scc1 {L("fail")}'
    NU=len(units); i_ld=NU-2*depth-5; i_ck=i_ld+depth+1; i_fl=NU-depth-1
    def early(i):
        if i==i_ld:
            for k,o in enumerate((DBG_INIT,DBG_X0,DBG_X1)): A(f'buffer_load_dword v{72+k}, off, {dbg}, 0 offset:{o} sc1'); pq.push('ini')
        if i==i_ck:
            assert not pq.has('ini')
            A(f's_branch {L("ic")}\n{L("iw")}:\nbuffer_load_dword v72, off, {dbg}, 0 offset:{DBG_INIT} sc1\n{tmo}\ns_waitcnt vmcnt(0)\n{L("ic")}:\nv_readfirstlane_b32 s{sT}, v72\ns_and_b32 s{sT2}, s{sT}, 0xffff\ns_cmp_lt_u32 s{sT2}, 64\ns_cbranch_scc1 {L("iw")}')
            if diag: A(f's_mov_b32 s98, s{sT}')
            A(f's_lshr_b32 s{sT}, s{sT}, 16\ns_cmp_gt_u32 s{sT}, 32\ns_cselect_b32 s{sT}, 8192, 0')
            if polfix is not None: A(f's_mov_b32 s{sT}, {polfix*8192}')
            A(f's_add_u32 s{sPUBR}, s{sPUBR}, s{sT}\ns_xor_b32 s{sAGR}, s{sPUBR}, 0x100000\ns_add_u32 s{sAGR4}, s{sAGR}, 4096')
            A(f's_cmp_eq_u32 s{sRED}, 0\ns_cbranch_scc1 {L("np0")}\ns_xor_b32 s{sT3}, s{sINB}, s{sINBX}')
            A(f'buffer_store_dword v{vT2}, v{vPUB}, {ws}, s{sAGL} offen sc1\nbuffer_store_dword v{vT2}, v{vPUBR}, {ws}, s{sPUBR} offen sc1')
            for base in (sINB,sT3):
                for j in range(2): A(f'buffer_load_dwordx4 v[16:19], v{vL16}, {ws}, s{base} offen offset:{1024*j} sc1')
            A(f'{L("np0")}:')
        if i==i_fl and fused:
            A(f's_lshl_b32 s{sT}, s{sRANK}, 7\ns_add_u32 s{sT}, s{sT}, {FL_QKV}\ns_add_u32 s{sFB}, s{S_WS}, s{sT}\ns_addc_u32 s{sFB+1}, s{S_WS+1}, 0')
            for k,o in enumerate((0,4096,12288,16384)):
                A(f's_add_u32 s{sT2}, s{sT}, {o}\nbuffer_load_dword v{76+k}, off, {ws}, s{sT2} sc1'); pq.push('fl')
    lds={}; pend=[]
    for i,(kind,f) in enumerate(units):
        A(f's_waitcnt vmcnt({pq.wait(f"u{i}")}) lgkmcnt(0)\ns_barrier')
        if kw.get('trace')==3: A(f's_memrealtime s[72:73]\ns_waitcnt lgkmcnt(0)\nv_mov_b32 v{vT0}, s72\nv_mov_b32 v{vT1}, 0\nds_write_b32 v{vT1}, v{vT0} offset:{7168+4*i}')
        if i==depth:
            assert not pq.has('arm')
            A(f'v_min_u32 v{vT2}, -2, v35')
            if not fused: A(f's_cmp_lg_u32 s{sWAVE}, 1\ns_cbranch_scc1 {L("noarr")}\ns_mov_b64 exec, 1\nv_mov_b32 v36, s{sPOL}\nbuffer_atomic_add v36, off, s[{S_DBG}:{S_DBG+3}], 0 offset:{DBG_INIT} sc1\ns_mov_b64 exec, -1\n{L("noarr")}:')
        early(i)
        if i+depth<len(units): issue(i+depth)
        rowtouch(i+depth+tch)
        if ctouch and i==len(units)-depth-2:
            A(f's_getpc_b64 s[72:73]\nv_lshlrev_b32 v24, 3, v{vL16}\nv_min_u32 v24, L_done-.-16, v24\nglobal_load_dword v25, v24, s[72:73]'); pq.push('ct')
        for z in pend: A(z)
        pend=[]
        sl=i%NS
        tmp=[('v',72+16*(i&1)),('v',80+16*(i&1))] if False else [('v',(40,84)[i&1]),('v',(48,92)[i&1])]
        for t in range(2):
            dst=UR.get((kind,f,t),tmp[t])
            for p in range(4):
                A(f'ds_read_b64_tr_b16 {R(dst,2,2*p)}, v{68+2*(p>>1)+t} offset:{sl*4096+(p&1)*1024}')
        for t in range(2):
            if (kind,f,t) not in UR:
                o = NS*4096 if (kind,f)==HALF else sl*4096+t*2048
                lds[(kind,f,t)]=o
                pend+=[f'ds_write_b128 v{vWB}, {R(tmp[t],4)} offset:{o}',f'ds_write_b128 v{vWB}, {R(tmp[t],4,4)} offset:{o+1024}']
    A('s_waitcnt lgkmcnt(0)\ns_barrier')
    for z in pend: A(z)
    def WO(tile,kap): return UR[('o',4,kap)] if tile==4 else UR[('o',2*(tile>>1)+kap,tile&1)]
    A(f's_mov_b32 s{S_T0}, s{S_WS}\ns_mov_b32 s{S_T0+1}, s{S_WS+1}\ns_cmp_eq_u32 s{sRED}, 1\ns_cselect_b32 s{S_T0+2}, {hex(WS_SIZE)}, 0')
    def kvwait(lab,first):
        ldf='\n'.join(f's_load_dword s{sFV+k}, s[{sFB}:{sFB+1}], {o} glc' for k,o in enumerate((0,4096,12288,16384)))
        if not first: A(f's_cmp_gt_u32 s{sRDY}, 63\ns_cbranch_scc1 {lab}e')
        A(f'{lab}a:\ns_min_u32 s{sT}, s{sFV}, s{sFV+1}\ns_min_u32 s{sT2}, s{sFV+2}, s{sFV+3}\ns_lshl_b32 s{sT}, s{sT}, 1\ns_lshl_b32 s{sT2}, s{sT2}, 1\ns_add_u32 s{sT2}, s{sT2}, 1\ns_min_u32 s{sRDY}, s{sT}, s{sT2}')
        A(f's_add_u32 s{sT}, s{sSTEP}, 1\ns_min_u32 s{sT}, s{sT}, 63\ns_cmp_gt_u32 s{sRDY}, s{sT}\ns_cbranch_scc1 {lab}d')
        A(f'{lab}b:\n{ldf}\n{tmo}\ns_waitcnt lgkmcnt(0)\ns_branch {lab}a')
        A(f'{lab}d:')
        if not first: A(ldf)
        A(f'{lab}e:')
    if diag: A(f's_memrealtime s[92:93]')
    if fused:
        assert not pq.q
        for k in range(4): A(f'v_readfirstlane_b32 s{sFV+k}, v{76+k}')
        kvwait(L('kv0'),True)
    A('s_waitcnt lgkmcnt(0)')
    if diag: A('s_memrealtime s[94:95]\ns_waitcnt lgkmcnt(0)')
    if stamps: A('s_memtime s[76:77]\ns_waitcnt lgkmcnt(0)\n'+'\n'.join(f's_mov_b32 s{r}, 0' for r in range(78,100)))
    A(f's_mov_b32 s{S_DBG}, s{S_WS}\ns_mov_b32 s{S_DBG+1}, s{S_WS+1}\ns_cmp_eq_u32 s{sWAVE}, 3\ns_cselect_b32 s{S_DBG+2}, {hex(WS_SIZE)}, 0')
    if fused:
        A(f'v_min_u32 v73, v73, v74\ns_nop 0\nv_readfirstlane_b32 s{sT}, v73\ns_cmp_lt_u32 s{sT}, 32\ns_cbranch_scc1 {L("slowmode")}')
    chain_loop(A,False,'',lds,WO,kvwait,fused,stamps,nsteps,copies,**kw)
    if fused:
        A(f'{L("slowmode")}:')
        chain_loop(A,True,'_s',lds,WO,kvwait,fused,0,nsteps,copies,**kw)
    A(f'{L("fail")}:\n{L("done")}:')
    A('s_waitcnt vmcnt(0)')

def chain_loop(A, fallback, sfx, lds, WO, kvwait, fused, stamps, nsteps, copies, g_rs=(32,12,12), g_ag=(52,8,8,8,8), rem=(3,8,13,18,22), kvg=(26,30,34,38), cks=(1,2,3,5,6), up=1, pubpos=-1, agf='', tchf='sc1', dvp=(1,4,5), off='', trace=0, trw=1):
    sc='sc1' if fallback else ''
    L=lambda n: f'L_{n}' if n in ('fail','done') else f'L_{n}{sfx}'
    ws=f's[{S_WS}:{S_WS+3}]'; rw=f's[{S_T0}:{S_T0+3}]'
    tmo=f's_add_u32 s{sTMO}, s{sTMO}, 1\ns_cmp_gt_u32 s{sTMO}, {CTMO}\ns_cbranch_scc1 {L("fail")}'
    stamp_n=[0]
    def stamp(grp=1):
        if stamps and (grp & int(stamps)):
            A(f's_memtime s[{50+2*stamp_n[0]}:{51+2*stamp_n[0]}]'); stamp_n[0]+=1
    vm=Q(); lg=Q(); retry=[]
    acc={'q0':vACC,'q1':vACC+4,'k0':vACC+8,'k1':vACC+12,'v0':vACC+16,'v1':vACC+20}
    q0,q1,k0,k1,v0,v1=[acc[x] for x in ('q0','q1','k0','k1','v0','v1')]
    def nops(n):
        while n>0:
            k=min(n,16); A(f's_nop {k-1}'); n-=k
    def agload(f):
        base=(sAGL if f<4 else sAGL4) if f<5 else (sAGR if f<9 else sAGR4)
        return f'buffer_load_dwordx4 v[{AREG[f]}:{AREG[f]+3}], v{vL16}, {ws}, s{base} offen offset:{(PERM[f%5]%4)*1024} sc1'
    issued=set()
    def ag(f): A(agload(f).replace(' sc1',' '+agf)); vm.push(f'ag{f}'); issued.add(f)
    def T(s): return (s[0],int(s[1]),int(s[2]))
    order=[T(x) for x in ('v00 q00 k00 v01 q01 v10 k01 k10 v11 k11 q10 q20 k20 q11 q21 v20 k21 q30 v21 k30 v30 q31 k31 v31 q40 v40 k40 q41 v41 k41 '
                          'k50 q50 k51 q51 k60 q61 q60 k61 k70 q70 k71 q71 q80 k80 q81 k81 q90 k90 q91 k91').split()]
    assert len(order)==50 and len(set(order))==50
    ll=[x for x in order if x in lds]; assert len(ll)==19
    stbuf={x:vST+8*(i%3) for i,x in enumerate(ll)}
    def rdhalf(x,h):
        if 'l' in off: return
        A(f'ds_read_b128 v[{stbuf[x]+4*h}:{stbuf[x]+4*h+3}], v{vWB} offset:{lds[x]+1024*h}'); lg.push(f'{x}{h}')
    def smf(d,a,b): A(f'v_smfmac_f32_16x16x64_bf16 v[{d}:{d+3}], v[{a}:{a+3}], {b}, v{vIDX}')
    def mm(x):
        kind,f,t=x
        smf(acc[f'{kind}{t}'],AREG[f],f'v[{stbuf[x]}:{stbuf[x]+7}]' if x in lds else R(UR[x],8))
    def prestage():
        for x in ll[:3]:
            for h in range(2): rdhalf(x,h)
    zs=list(range(vACC+5,vACC+24))+list(range(vACC,vACC+5))
    def zero_acc():
        for r in zs: A(f'v_mov_b32 v{r}, 0')
    zero_acc(); prestage()
    A(f'{L("top")}:')
    stamp(4)
    A('s_barrier')
    stamp(4)
    def rts(k):
        if trace==2: A(f's_memrealtime s[{60+2*k}:{61+2*k}]')
    if trace==2:
        rts(2)
        A(f's_lshl_b32 s{sT2}, s{sSTEP}, 4\nv_mov_b32 v{vT1}, s{sT2}\ns_waitcnt lgkmcnt(0)\ns_cmp_eq_u32 s{sWAVE}, {trw}\ns_cselect_b64 exec, 1, 0')
        for k in range(4): A(f'v_mov_b32 v{vT0}, s{60+2*k}\nds_write_b32 v{vT1}, v{vT0} offset:{7168+4*k}'); lg.push('x')
        A('s_mov_b64 exec, -1')
    if trace==1:
        A(f's_memtime s[74:75]\ns_memrealtime s[72:73]\ns_lshl_b32 s{sT2}, s{sWAVE}, 6\ns_add_u32 s{sT2}, s{sT2}, s{sSTEP}\ns_lshl_b32 s{sT2}, s{sT2}, 2\nv_mov_b32 v{vT1}, s{sT2}\ns_waitcnt lgkmcnt(0)\ns_cmp_eq_u32 s{sWAVE}, 1\ns_cselect_b32 s74, s72, s74\nv_mov_b32 v{vT0}, s74\nds_write_b32 v{vT1}, v{vT0} offset:7168'); lg.push('x')
    pubR=f'buffer_store_dword v{vT2}, v{vPUBR}, {rw}, s{sPUBR} offen sc1'
    for f in range(5):
        nops(g_ag[f]); ag(f)
        if pubpos==f: A(pubR); vm.push('pr')
    for k,f in enumerate(range(5,9)):
        if rem[k]<0: nops(-rem[k]); ag(f)
    stamp(4)
    def ckA(f):
        if 'c' in off and f:
            if vm.has(f'ag{f}') and 'w' not in off: A(f's_waitcnt vmcnt({vm.wait(f"ag{f}")})')
            return
        if '1' in off and f: return
        a=AREG[f]
        if vm.has(f'ag{f}'): A(f's_waitcnt vmcnt({vm.wait(f"ag{f}")})')
        A(f'v_max3_u32 v{vT1}, v{a}, v{a+1}, v{a+2}')
    def ckB(f):
        if ('c' in off or '1' in off) and f: return
        A(f'v_max_u32 v{vT1}, v{vT1}, v{AREG[f]+3}')
    def ckC(f):
        if 'c' in off and f: return
        if '1' in off and f:
            if vm.has(f'ag{f}'): A(f's_waitcnt vmcnt({vm.wait(f"ag{f}")})')
            A(f'v_cmp_eq_u32 vcc, -1, v{AREG[f]+3}'); return
        A(f'v_cmp_eq_u32 vcc, -1, v{vT1}')
    def ckD(f):
        A(f's_cbranch_vccnz {L(f"rt{f}")}\n{L(f"ok{f}")}:')
        retry.append((f,[g for g in range(f,5 if f<5 else 10) if g in issued]))
    for f in range(up): ckA(f); ckB(f); ckC(f); ckD(f)
    stamp(5); rts(3)
    n=len(order); gaps=[[] for _ in range(n+2)]
    first={f:min(i for i,x in enumerate(order) if x[1]==f) for f in range(10)}
    last={f:max(i for i,x in enumerate(order) if x[1]==f) for f in range(10)}
    for f in range(up,10):
        u=first[f]
        if f in cks:
            gaps[u].append((0,lambda f=f: ckD(f)))
            gaps[u-2].append((2,lambda f=f: ckC(f))); gaps[u-3].append((2,lambda f=f: ckB(f))); gaps[u-4].append((2,lambda f=f: ckA(f)))
        else: gaps[u].append((8,lambda f=f: A(f's_waitcnt vmcnt({vm.wait(f"ag{f}")})')))
    for i,x in enumerate(ll):
        u=order.index(x)
        gaps[u].append((9,lambda x=x: A(f's_waitcnt lgkmcnt({lg.wait(f"{x}1")})') if lg.has(f'{x}1') else None))
        if i+3<len(ll):
            y=ll[i+3]
            gaps[u+1].append((1,lambda y=y: rdhalf(y,0))); gaps[u+2].append((1,lambda y=y: rdhalf(y,1)))
    for k,f in enumerate(range(5,10)):
        if rem[k]>=0: gaps[rem[k]].append((3,lambda f=f: ag(f)))
    assert rem[4]>last[0]
    def kvload(f):
        if 'k' in off: return
        A(f'buffer_load_dwordx4 v[{AREG[f]}:{AREG[f]+3}], v{vL16}, {ws}, s{sKV} offen offset:{1024*(f-1)} sc1'); vm.push(f'kv{f}')
    for f in range(1,5): gaps[max(last[f]+1,kvg[f-1])].append((3,lambda f=f: kvload(f)))
    for i in range(n):
        for _,fn in sorted(gaps[i],key=lambda z:z[0]): fn()
        if i==30: stamp()
        if i in (5,11,17,24,30,38): stamp(4)
        mm(order[i])
    assert not gaps[n] and not gaps[n+1]
    stamp()
    dq=[('v',f,t) for f in range(5,10) for t in range(2)]
    def dv(n,between=None):
        for _ in range(n):
            if dq:
                mm(dq.pop(0))
                if between: A(between.pop(0))
    def padd(d,x,y): A(f'v_pk_add_f32 v[{d}:{d+1}], v[{x}:{x+1}], v[{y}:{y+1}]')
    def cvt(d,x,y): A(f'v_cvt_pk_bf16_f32 v{d}, v{x}, v{y}')
    A(f's_add_u32 s{sSTEP}, s{sSTEP}, 1\ns_add_u32 s{sRINGB}, s{sRING}, 65536')
    A('s_nop 1')
    A(f's_mov_b64 s[4:5], -1\n{L("again")}:')
    padd(q0,q0,q0+2); padd(k0,k0,k0+2); padd(q1,q1,q1+2); padd(k1,k1,k1+2)
    cvt(k0,k0,k0+1); cvt(k0+1,q0,q0+1); cvt(k0+2,k1,k1+1); cvt(k0+3,q1,q1+1)
    A(f'v_mfma_f32_16x16x16_bf16 v[{q0}:{q0+3}], v[{k0}:{k0+1}], v[{vID}:{vID+1}], 0')
    A(f's_mov_b64 vcc, s[{sMC}:{sMC+1}]')
    A(f'v_mfma_f32_16x16x16_bf16 v[{q1}:{q1+3}], v[{k0+2}:{k0+3}], v[{vID}:{vID+1}], 0')
    A(f'v_cmp_u_f32 s[6:7], v{k1}, v{k1+1}')
    for r in range(4): A(f'v_mov_b32 v{vT0+r}, -1')
    A(f's_waitcnt vmcnt({vm.wait("kv2") if vm.has("kv2") else 0})')
    X=k1
    cvt(X,q0,q0+1); cvt(X+1,q0+2,q0+3); cvt(X+2,q1,q1+1); cvt(X+3,q1+2,q1+3)
    A(f's_and_b64 s[6:7], s[6:7], s[4:5]\ns_cbranch_scc1 {L("net")}')
    stamp()
    T1,T2,T0=q0,q1,k0
    A(f'v_mfma_f32_16x16x32_bf16 v[{T1}:{T1+3}], v[{vKX}:{vKX+3}], v[{X}:{X+3}], 0')
    A(f'v_mov_b32 v{vST+1}, s{sSTEP}')
    A(f'v_mfma_f32_16x16x32_bf16 v[{T2}:{T2+3}], v[{vKX+4}:{vKX+7}], v[{X}:{X+3}], 0')
    if 'f' not in off: A(f'buffer_store_dword v{vST+1}, off, s[{S_DBG}:{S_DBG+3}], s{sFLG} sc1'); vm.push('fl')
    else: A('s_nop 0')
    A(f'v_mfma_f32_16x16x32_bf16 v[{T0}:{T0+3}], v[{X}:{X+3}], v[{X}:{X+3}], 0')
    ra=[f'buffer_store_dwordx4 v[{vT0}:{vT0+3}], v{vL16}, {rw}, s{sINB} offen offset:{1024*j} {sc}' for j in range(2)]
    if 't' not in off: A(f'buffer_load_dword v{vKX+7}, v{vTCH}, {ws}, s{sTOUCH} offen {tchf}'); vm.push('tch')
    else: A('s_nop 0')
    A(f'v_add_u32 v{vST}, s{sW4}, v{vL16}')
    dv(dvp[0]); A(f's_add_u32 s{sTOUCH}, s{sTOUCH}, {SEGB}\ns_add_u32 s{sKV}, s{sKV}, {SEGB}'); nops(2-dvp[0])
    dq2='quad_perm:[2,3,0,1] row_mask:0xf bank_mask:0xf'
    U=k1
    for r in range(4): A(f'v_cndmask_b32_dpp v{U+r}, v{T1+r}, v{T2+r}, vcc {dq2}')
    A(f'ds_write_b128 v{vSW}, v[{U}:{U+3}]'); lg.push('x')
    A(f'v_cndmask_b32_dpp v{T0+2}, v{T0}, v{T0+1}, vcc {dq2}')
    A(f'ds_write_b32 v{vST}, v{T0+2} offset:{LDS_T0}'); lg.push('S')
    xa=vKX+4
    bt=[f'v_xor_b32 v{xa+k}, {1024*(k+1)}, v{vSW}' for k in range(3)]
    bt.append(ra[0]); vm.push('ra')
    A(bt.pop(0)); dv(dvp[1],bt)
    for z in bt: A(z)
    A(f's_waitcnt lgkmcnt({lg.wait("S")})')
    stamp()
    A('s_barrier')
    a=vACC; tz=vKX
    A(f'ds_read_b128 v[{tz}:{tz+3}], v{vL16} offset:{LDS_T0}')
    for k in range(3): A(f'ds_read_b128 v[{a+4*k}:{a+4*k+3}], v{xa+k}')
    bt=[ra[1]]; vm.push('ra')
    dv(dvp[2],bt)
    for z in bt: A(z)
    A('s_waitcnt lgkmcnt(0)'); lg.q=[]
    padd(tz,tz,tz+2); padd(a,a,a+4); padd(a+2,a+2,a+6); padd(a+8,a+8,a+12); padd(a+10,a+10,a+14)
    A(f'v_add_f32 v{a+4}, v{tz}, v{tz+1}')
    padd(a,a,a+8); padd(a+2,a+2,a+10)
    m,m2=a+5,a+6
    stamp()
    VM=a+8; zz=[VM+3,VM+4,VM+6,VM+7]
    ONE=vST+8; P=vST+12; O0=vST+16; O1=vST+4; SUM=vST; PMA=VM+2; PMB=VM+4
    def two():
        dv(1)
        for _ in range(2): A(f'v_mov_b32 v{zz.pop(0)}, 0')
    A(f'v_max3_f32 v{m}, v{a}, v{a+1}, v{a+4}\nv_max3_f32 v{m}, v{m}, v{a+2}, v{a+3}')
    A(f'v_mov_b32 v{ONE}, 0x3f803f80\nv_mov_b32 v{ONE+1}, 0x3f803f80')
    A(f'v_max_f32_dpp v{m}, v{m}, v{m} {dq2}')
    A(f'v_mov_b32 v{m2}, v{m}'); two(); A(f'v_permlane16_swap_b32 v{m}, v{m2}\nv_max_f32 v{m}, v{m}, v{m2}')
    A(f'v_mov_b32 v{m2}, v{m}'); two(); A(f'v_permlane32_swap_b32 v{m}, v{m2}\nv_max_f32 v{m}, v{m}, v{m2}')
    dv(len(dq))
    A(f'v_mul_f32 v{m}, s{sC}, v{m}')
    for r in range(5): A(f'v_fma_f32 v{a+r}, v{a+r}, s{sC}, -v{m}')
    for r in range(5): A(f'v_exp_f32 v{a+r}, v{a+r}')
    cvt(P,a,a+1); cvt(P+1,a+2,a+3)
    A(f'v_mov_b32_dpp v{m2}, v{a+4} {dq2}\nv_mov_b32_dpp v{P+2}, v{P} {dq2}\nv_mov_b32_dpp v{P+3}, v{P+1} {dq2}')
    padd(v0,v0,v0+2); padd(v1,v1,v1+2)
    if vm.has('kv4'): A(f's_waitcnt vmcnt({vm.wait("kv4")})')
    stamp()
    A(f'v_mfma_f32_16x16x32_bf16 v[{O0}:{O0+3}], v[{vVX}:{vVX+3}], v[{P}:{P+3}], 0')
    cvt(VM,v0,v0+1); cvt(VM+1,v1,v1+1)
    A(f'v_mfma_f32_16x16x32_bf16 v[{O1}:{O1+3}], v[{vVX+4}:{vVX+7}], v[{P}:{P+3}], 0')
    cvt(PMA,a+4,m2); cvt(PMB+1,a+4,m2)
    A('s_nop 1')
    A(f'v_mfma_f32_16x16x32_bf16 v[{O0}:{O0+3}], v[{VM}:{VM+3}], v[{PMA}:{PMA+3}], v[{O0}:{O0+3}]')
    A(f'v_mov_b32 v{ONE+2}, 0x3f803f80\nv_mov_b32 v{ONE+3}, 0x3f803f80')
    A(f'v_mfma_f32_16x16x32_bf16 v[{O1}:{O1+3}], v[{VM}:{VM+3}], v[{PMB}:{PMB+3}], v[{O1}:{O1+3}]')
    dz=list(range(vA,vA+20))
    for _ in range(4): A(f'v_mov_b32 v{dz.pop(0)}, 0')
    A(f's_mov_b64 exec, s[{sM3}:{sM3+1}]')
    OQ=a
    cvt(OQ,O0,O0+1); cvt(OQ+1,O0+2,O0+3); A('s_nop 0'); cvt(OQ+2,O1,O1+1); cvt(OQ+3,O1+2,O1+3)
    A(f'ds_write_b128 v{vOW}, v[{OQ}:{OQ+3}]\ns_mov_b64 exec, -1')
    stamp()
    for _ in range(12): A(f'v_mov_b32 v{dz.pop(0)}, 0')
    D=[vA+4*t for t in range(5)]
    A('s_waitcnt lgkmcnt(0)\ns_barrier')
    stamp(3)
    OA=[a+16,a+20]
    A(f'ds_read_b128 v[{OA[0]}:{OA[0]+3}], v{vL16} offset:{LDS_O}\nds_read_b128 v[{OA[1]}:{OA[1]+3}], v{vL16} offset:{LDS_O+1024}')
    for _ in range(4): A(f'v_mov_b32 v{dz.pop(0)}, 0')
    A(f'v_mfma_f32_16x16x32_bf16 v[{SUM}:{SUM+3}], v[{P}:{P+3}], v[{ONE}:{ONE+3}], 0')
    A(f'v_mfma_f32_16x16x32_bf16 v[{SUM}:{SUM+3}], v[{PMB}:{PMB+3}], v[{ONE}:{ONE+3}], v[{SUM}:{SUM+3}]')
    A('s_waitcnt lgkmcnt(1)' if not stamps else 's_waitcnt lgkmcnt(0)')
    stamp(2)
    wo=lambda t,k: smf(D[t],OA[k],R(WO(t,k),8))
    RD=a
    sca=[f's_add_u32 s{sAGL}, s{sAGL}, {SEGB}',f's_add_u32 s{sAGL4}, s{sAGL4}, {SEGB}',f's_add_u32 s{sAGR}, s{sAGR}, 16384',f's_add_u32 s{sAGR4}, s{sAGR4}, 16384',f's_add_u32 s{sPUBR}, s{sPUBR}, 16384',f's_xor_b32 s{sINB}, s{sINB}, s{sINBX}']
    d=D[4]
    wo(4,0); A('s_nop 0'); wo(0,0); A('s_waitcnt lgkmcnt(0)' if not stamps else 's_nop 0'); wo(4,1); A('s_nop 0'); A(sca[0])
    wo(1,0); A(f'v_rcp_f32 v{SUM}, v{SUM}'); A(sca[1]); A(sca[2])
    wo(0,1); A(f'v_rcp_f32 v{SUM+1}, v{SUM+1}'); A(sca[3])
    wo(1,1); A(f'v_add_f32 v{d}, v{d}, v{d+2}'); A(sca[4])
    wo(2,0); A(f'v_add_f32 v{d+1}, v{d+1}, v{d+3}'); A(sca[5])
    wo(3,0); A(f'v_mul_f32 v{d}, v{d}, v{SUM}')
    wo(2,1); A(f'v_mul_f32 v{d+1}, v{d+1}, v{SUM+1}')
    wo(3,1); cvt(RD+4,d,d+1)
    stamp(2)
    A(f'buffer_store_dword v{RD+4}, v{vRSC}, {ws}, s{sRING} offen {sc}')
    def pmul(d): A(f'v_pk_mul_f32 v[{d}:{d+1}], v[{d}:{d+1}], v[{SUM}:{SUM+1}]')
    for t,base in ((0,sRING),(2,sRINGB)):
        padd(D[t],D[t],D[t]+2); padd(D[t+1],D[t+1],D[t+1]+2); pmul(D[t]); pmul(D[t+1]); cvt(RD+t,D[t],D[t]+1); cvt(RD+t+1,D[t+1],D[t+1]+1)
        stamp(2)
        A(f'buffer_store_dwordx2 v[{RD+t}:{RD+t+1}], v{vRSA}, {ws}, s{base} offen {sc}')
    stamp(3); rts(0)
    zero_acc()
    A(f's_xor_b32 s{sRING}, s{sRING}, s{sRINGX}')
    A(f's_cmp_eq_u32 s{sRED}, 0\ns_cbranch_scc1 {L("nred")}')
    RC=vA+16; RBUF=[vA,vA+8,vKX,vVX][:len(g_rs)]; nb=len(RBUF)
    def rsload(b):
        for j in range(2): A(f'buffer_load_dwordx4 v[{b+4*j}:{b+4*j+3}], v{vL16}, {ws}, s{sINB} offen offset:{1024*j} sc1')
    def rschk(b):
        n=2*(nb-1)
        A(f's_waitcnt vmcnt({n+1})\nv_mfma_f32_16x16x32_bf16 v[{RC}:{RC+3}], v[{vSEL}:{vSEL+3}], v[{b}:{b+3}], 0')
        A(f'v_max3_u32 v{vT1}, v{b}, v{b+1}, v{b+2}')
        A(f's_waitcnt vmcnt({n})\nv_mfma_f32_16x16x32_bf16 v[{RC}:{RC+3}], v[{vSEL}:{vSEL+3}], v[{b+4}:{b+7}], v[{RC}:{RC+3}]')
        A(f'v_max3_u32 v{vT0}, v{b+4}, v{b+5}, v{b+6}\nv_max3_u32 v{vT1}, v{vT1}, v{b+3}, v{b+7}\nv_max_u32 v{vT1}, v{vT1}, v{vT0}\nv_cmp_eq_u32 vcc, -1, v{vT1}')
    pre=[(x,h) for x in ll[:3] for h in range(2)]
    for k,b in enumerate(RBUF):
        n_=g_rs[k]
        while n_>=4 and pre: rdhalf(*pre.pop(0)); n_-=4
        nops(n_); rsload(b)
    for z in pre: rdhalf(*z)
    stamp(2)
    if stamps==2: A(f's_waitcnt vmcnt({2*(nb-1)})'); stamp(2)
    rschk(RBUF[0])
    A(f's_cbranch_vccnz {L("rs_1")}')
    A(f'{L("rsok")}:\ns_nop 2'); rts(1)
    A(f'v_add_f32_dpp v{RC+2}, v{RC}, v{RC} row_ror:4 row_mask:0xf bank_mask:0xf\nv_add_f32_dpp v{RC+3}, v{RC+1}, v{RC+1} row_ror:4 row_mask:0xf bank_mask:0xf\ns_nop 0')
    A(f'v_add_f32_dpp v{RC}, v{RC+2}, v{RC+2} row_ror:8 row_mask:0xf bank_mask:0xf\nv_add_f32_dpp v{RC+1}, v{RC+3}, v{RC+3} row_ror:8 row_mask:0xf bank_mask:0xf')
    cvt(vT2,RC,RC+1)
    A(f'v_min_u32 v{vT2}, -2, v{vT2}')
    A(f'{L("pub2")}:')
    A(f'buffer_store_dword v{vT2}, v{vPUB}, {ws}, s{sAGL} offen {sc}')
    if pubpos<0: A(pubR)
    A(f'{L("send")}:')
    stamp(7)
    if stamps:
        A('s_waitcnt lgkmcnt(0)')
        prev=76
        A(f's_sub_u32 s{sT2}, s{sSTEP}, 6\ns_cmp_ge_u32 s{sT2}, 24\ns_cbranch_scc1 {L("nacc")}')
        for i in range(stamp_n[0]):
            A(f's_sub_u32 s{sT2}, s{50+2*i}, s{prev}\ns_add_u32 s{78+i}, s{78+i}, s{sT2}'); prev=50+2*i
        A(f'{L("nacc")}:\ns_mov_b32 s76, s{prev}')
    A(f's_cmp_lt_u32 s{sSTEP}, {nsteps}\ns_cbranch_scc1 {L("top")}')
    if pubpos>=0: A(pubR)
    A(f's_branch {L("done")}')
    A(f'{L("nred")}:')
    if fused: kvwait(L('kvw'),False)
    prestage(); A(f's_branch {L("send")}')
    A(f'{L("rs_1")}:')
    for k in range(nb):
        rsload(RBUF[k])
        if stamps: A('s_add_u32 s98, s98, 1')
        rschk(RBUF[(k+1)%nb]); A(f's_cbranch_vccz {L("rsok")}')
    A(tmo); A(f's_branch {L("rs_1")}')
    for f,lst in retry:
        a_=AREG[f]
        A(f'{L(f"rt{f}")}:')
        for g in lst: A(agload(g))
        A(tmo)
        if stamps: A(f's_add_u32 s{96 if f<5 else 97}, s{96 if f<5 else 97}, {1 if f%5==0 else 0x10000}')
        for n_,g in enumerate(lst):
            b_=AREG[g]
            A(f's_waitcnt vmcnt({len(lst)-1-n_})')
            if n_==0: A(f'v_max3_u32 v{vT1}, v{b_}, v{b_+1}, v{b_+2}\nv_max_u32 v{vT1}, v{vT1}, v{b_+3}\nv_cmp_eq_u32 vcc, -1, v{vT1}\ns_cbranch_vccnz {L(f"rt{f}")}')
            else: A(f'v_max3_u32 v{vT1}, v{vT1}, v{b_}, v{b_+1}\nv_max3_u32 v{vT1}, v{vT1}, v{b_+2}, v{b_+3}')
        A(f'v_cmp_eq_u32 vcc, -1, v{vT1}\ns_cbranch_vccz {L(f"ok{f}")}\ns_branch {L(f"rt{f}")}')
    A(f'{L("net")}:')
    if stamps: A('s_add_u32 s98, s98, 0x10000')
    A('s_mov_b64 s[4:5], 0\ns_waitcnt vmcnt(0)\ns_nop 7')
    zero_acc()
    for f in range(10):
        a_=vA if f<5 else AREG[f]
        A(f'{L(f"nt{f}")}:'); A(agload(f).replace(f'v[{AREG[f]}:{AREG[f]+3}]',f'v[{a_}:{a_+3}]')); A(tmo)
        A(f's_waitcnt vmcnt(0)\nv_max3_u32 v{vT1}, v{a_}, v{a_+1}, v{a_+2}\nv_max_u32 v{vT1}, v{vT1}, v{a_+3}\nv_cmp_eq_u32 vcc, -1, v{vT1}\ns_cbranch_vccnz {L(f"nt{f}")}')
        for x in order:
            if x[1]!=f: continue
            if x in lds:
                A(f'ds_read_b128 v[{vST}:{vST+3}], v{vWB} offset:{lds[x]}\nds_read_b128 v[{vST+4}:{vST+7}], v{vWB} offset:{lds[x]+1024}\ns_waitcnt lgkmcnt(0)')
            smf(acc[f'{x[0]}{x[2]}'],a_,f'v[{vST}:{vST+7}]' if x in lds else R(UR[x],8))
    A(f's_nop 7\ns_branch {L("again")}')
```

```python
from common import *
sID,sWAVE,sTID=20,22,21
def w_issue(A,sHEAD,sT,sT2,sM0):
    vL=255
    A(f'v_and_b32 v1, 15, v{vL}\nv_lshrrev_b32 v2, 4, v{vL}')
    A('v_lshlrev_b32 v3, 1, v2\nv_xor_b32 v3, v3, v1\nv_lshlrev_b32 v3, 4, v3\nv_lshl_add_u32 v4, v2, 13, v3\nv_xor_b32 v5, 128, v4')
    A(f's_lshl_b32 s{sT}, s{sHEAD}, 8\ns_mul_i32 s{sT2}, s{sWAVE}, {160*8192}\ns_add_u32 s{sT}, s{sT}, s{sT2}\ns_mul_i32 s{sM0}, s{sWAVE}, 40960')
    for i in range(40):
        A(f's_mov_b32 m0, s{sM0}\ns_add_u32 s{sM0}, s{sM0}, 1024')
        A(f'buffer_load_dwordx4 v{4+((i>>1)&1)}, {T0}, s{sT} offen lds\ns_add_u32 s{sT}, s{sT}, 32768')
    A(f'v_bfe_u32 v6, v{vL}, 2, 2\nv_and_b32 v7, 1, v2\nv_lshl_add_u32 v7, v7, 2, v6\nv_lshlrev_b32 v7, 1, v7')
    A(f'v_bfe_u32 v8, v{vL}, 1, 1\ns_lshl_b32 s{sT}, s{sWAVE}, 2\nv_add_u32 v8, s{sT}, v8\nv_xor_b32 v8, v8, v7\nv_lshlrev_b32 v8, 4, v8')
    A(f'v_lshl_add_u32 v9, v2, 3, v6\nv_lshl_add_u32 v8, v9, 8, v8\nv_and_b32 v9, 1, v{vL}\nv_lshl_add_u32 v8, v9, 3, v8\nv_xor_b32 v9, 32, v8')
def w_read(A,dst):
    for kk in range(20):
        if kk and kk%8==0: A('v_add_u32 v8, 0x10000, v8\nv_add_u32 v9, 0x10000, v9')
        for T in range(2):
            for p in range(2):
                k_,r=dst(kk*2+T); r+=2*p
                A(f'ds_read_b64_tr_b16 {k_}[{r}:{r+1}], v{8+T} offset:{((kk%8)*32+4*p)*256}')
def qkv_code(A, flags=False, sfx='q', diag=False, stf='sc1', nost=0, pre=1, prew=0, prewo=1):
    L=lambda n: f'L_{n}{sfx}'
    sMAT,sHEAD,sHALF,sT,sT2,sOUT,sOSTR,sX,sIT,sM0,sFL=24,25,26,27,28,29,30,31,32,33,34
    vL=255
    A(f's_cmp_ge_u32 s{sID}, 96\ns_cselect_b32 s{sHALF}, 1, 0\ns_cselect_b32 s{sT}, 96, 0\ns_sub_u32 s{sT}, s{sID}, s{sT}')
    A(f's_lshr_b32 s{sMAT}, s{sT}, 5\ns_and_b32 s{sHEAD}, s{sT}, 31')
    A('s_load_dwordx2 s[36:37], s[0:1], 0\ns_load_dwordx2 s[38:39], s[0:1], 16\ns_load_dwordx4 s[40:43], s[0:1], 24\ns_waitcnt lgkmcnt(0)')
    A(f's_cmp_eq_u32 s{sMAT}, 1\ns_cselect_b32 s40, s42, s40\ns_cselect_b32 s41, s43, s41\ns_cmp_eq_u32 s{sMAT}, 2\ns_cselect_b32 s40, s38, s40\ns_cselect_b32 s41, s39, s41')
    A.srd(S_T0,40,5242880)
    w_issue(A,sHEAD,sT,sT2,sM0)
    A(f's_mul_i32 s{sT}, s{sWAVE}, 640\nv_add_u32 v20, s{sT}, v{vL}\ns_mov_b32 s{sT2}, 52429')
    for ii in range(10):
        A(f'v_mul_lo_u32 v21, v20, s{sT2}\nv_lshrrev_b32 v21, 22, v21\nv_mul_u32_u24 v22, 80, v21\nv_sub_u32 v23, v20, v22\nv_and_b32 v21, 15, v21\nv_xor_b32 v23, v23, v21\nv_add_lshl_u32 v{10+ii}, v22, v23, 4\nv_add_u32 v20, 64, v20')
    A('v_mul_u32_u24 v24, 1280, v1')
    for k in range(4): A(f'v_add_u32 v25, {4*k}, v2\nv_xor_b32 v25, v25, v1\nv_lshl_add_u32 v{20+k}, v25, 4, v24')
    A(f'v_lshlrev_b32 v0, 4, v{vL}')
    A(f's_lshl_b32 s{sT}, s{sHEAD}, 14\ns_lshl_b32 s{sT2}, s{sWAVE}, 12\ns_add_u32 s{sOUT}, s{sT}, s{sT2}\ns_lshl_b32 s{sT}, s{sMAT}, 11\ns_add_u32 s{sT}, s{sOUT}, s{sT}')
    A(f's_lshr_b32 s{sOUT}, s{sOUT}, 1\ns_add_u32 s{sOUT}, s{sOUT}, {WS_Q}\ns_cmp_eq_u32 s{sMAT}, 2\ns_cselect_b32 s{sOUT}, s{sOUT}, s{sT}\ns_mov_b32 s{sT2}, {SEGB}\ns_cselect_b32 s{sOSTR}, 0x40000, s{sT2}')
    A(f's_mul_i32 s{sT}, s{sHALF}, s{sOSTR}\ns_add_u32 s{sOUT}, s{sOUT}, s{sT}\ns_lshl_b32 s{sOSTR}, s{sOSTR}, 1')
    A(f's_mul_i32 s{sX}, s{sHALF}, 40960')
    A(f's_lshl_b32 s{sFL}, s{sID}, 7\ns_add_u32 s{sFL}, s{sFL}, {FL_QKV}')
    A(f's_waitcnt vmcnt(0)\ns_barrier')
    w_read(A,lambda n: ('a',4*n))
    A.srd(S_T0,36,2621440)
    A(f's_mul_i32 s{sM0}, s{sWAVE}, 10240')
    A('s_waitcnt lgkmcnt(0)\ns_barrier')
    def dma(ii): return [f's_add_u32 m0, s{sM0}, {ii*1024}', f'buffer_load_dwordx4 v{10+ii}, {T0}, s{sX} offen lds']
    def adv(): return [f's_add_u32 s{sX}, s{sX}, 81920', f's_min_u32 s{sX}, s{sX}, {2621440-40960}', f's_add_u32 s{sM0}, s{sM0}, 40960', f's_cmp_ge_u32 s{sM0}, 163840', f's_cselect_b32 s{sT}, 163840, 0', f's_sub_u32 s{sM0}, s{sM0}, s{sT}']
    if flags: A(f'buffer_load_dword v30, off, {DBG}, 0 offset:{DBG_INIT} sc1')
    for s_ in range(3):
        for ii in range(10):
            d=dma(ii); A(d[0]); A('s_nop 0'); A(d[1])
        for z in adv(): A(z)
    if diag: A('s_memrealtime s[94:95]\ns_memtime s[86:87]')
    A(f's_mov_b32 s{sIT}, 0\ns_waitcnt vmcnt(20)')
    A(f's_cmp_eq_u32 s{sMAT}, 1\ns_cbranch_scc1 {L("v")}')
    XB=32; ACC=64; OUTR=80
    for var in ('k','v'):
        A(f'{L(var)}:')
        A(f's_barrier')
        lg=Q()
        def rd(kk,tt):
            b=XB+8*(kk%4)+4*tt
            A(f'ds_read_b128 v[{b}:{b+3}], v{20+(kk&3)} offset:{(kk>>2)*256+tt*20480}'); lg.push(f'{kk}_{tt}')
        for kk in range(3):
            for tt in range(2): rd(kk,tt)
        if flags:
            A(f's_cmp_lg_u32 s{sWAVE}, 0\ns_cbranch_scc1 {L(var+"nf")}\ns_cmp_lt_u32 s{sIT}, 4\ns_cbranch_scc1 {L(var+"nf")}\ns_cmp_gt_u32 s{sIT}, 4\ns_cbranch_scc1 {L(var+"ni")}')
            A(f's_mov_b32 s{sT}, 0\ns_branch {L(var+"ic")}\n{L(var+"iw")}:\nbuffer_load_dword v30, off, {DBG}, 0 offset:{DBG_INIT} sc1\ns_add_u32 s{sT}, s{sT}, 1\ns_cmp_gt_u32 s{sT}, 50000\ns_cbranch_scc1 L_end\ns_waitcnt vmcnt(0)\n{L(var+"ic")}:\nv_readfirstlane_b32 s44, v30\ns_and_b32 s44, s44, 0xffff\ns_cmp_ge_u32 s44, {NINIT}\ns_cbranch_scc1 {L(var+"ni")}\ns_sleep 32\ns_branch {L(var+"iw")}')
            A(f'{L(var+"ni")}:\ns_sub_u32 s{sT}, s{sIT}, 3\nv_mov_b32 v30, s{sT}\ns_mov_b64 exec, 1\nbuffer_store_dword v30, off, {WS}, s{sFL} sc1\ns_mov_b64 exec, -1\n{L(var+"nf")}:')
        side=[]
        for ii in range(10): side+=dma(ii)
        side+=adv()
        for kk in range(20):
            for n,(tt,T) in enumerate(((0,0),(0,1),(1,0),(1,1))):
                if T==0: A(f's_waitcnt lgkmcnt({lg.wait(f"{kk}_{tt}")})')
                x=f'v[{XB+8*(kk%4)+4*tt}:{XB+8*(kk%4)+4*tt+3}]'; w=f'a[{(kk*2+T)*4}:{(kk*2+T)*4+3}]'
                d=ACC+8*tt+4*T; c='0' if kk==0 else f'v[{d}:{d+3}]'
                A(f'v_mfma_f32_16x16x32_bf16 v[{d}:{d+3}], '+(f'{w}, {x}' if var=='k' else f'{x}, {w}')+f', {c}')
                if kk+3<20 and n in (0,2): rd(kk+3,n>>1)
                if n in (1,3) and side: A(side.pop(0))
        assert not side
        A(f's_add_u32 s{sIT}, s{sIT}, 1\ns_and_b32 s{sT}, s{sIT}, 3\ns_cmp_eq_u32 s{sT}, 0\ns_mov_b32 s{sT2}, 40960\ns_cselect_b32 s{sT}, {-3*40960}, s{sT2}')
        for k in range(4): A(f'v_add_u32 v{20+k}, s{sT}, v{20+k}')
        for o in range(2):
            for h in range(2):
                d=ACC+8*o+4*h if var=='k' else ACC+8*h+4*o
                cvt(A,OUTR+4*o+2*h,d,d+1); cvt(A,OUTR+4*o+2*h+1,d+2,d+3)
            A(f'buffer_store_dwordx4 v[{OUTR+4*o}:{OUTR+4*o+3}], v0, {WS}, s{sOUT} offen offset:{1024*o} {stf}')
        if nost: A(f's_mov_b32 s{sOSTR}, 0')
        A(f's_add_u32 s{sOUT}, s{sOUT}, s{sOSTR}\ns_cmp_lt_u32 s{sIT}, 3\ns_cbranch_scc1 {L(var+"e")}')
        A(f's_cmp_lt_u32 s{sIT}, 32\ns_waitcnt vmcnt(26)\ns_cbranch_scc1 {L(var)}\ns_branch {L("end")}')
        A(f'{L(var+"e")}:\ns_waitcnt vmcnt(22)\ns_branch {L(var)}')
    A(f'{L("end")}:\ns_waitcnt vmcnt(0)\ns_barrier')
    if flags:
        A(f's_cmp_lg_u32 s{sWAVE}, 0\ns_cbranch_scc1 {L("nf")}\nv_mov_b32 v30, 32\ns_mov_b64 exec, 1\nbuffer_store_dword v30, off, {WS}, s{sFL} sc1\ns_mov_b64 exec, -1\n{L("nf")}:')

def prefetch_code(A,which):
    A('s_load_dwordx2 s[36:37], s[0:1], 0\ns_load_dwordx2 s[38:39], s[0:1], 56')
    A(f's_sub_u32 s26, s21, 128\ns_lshl_b32 s26, s26, 2\ns_add_u32 s26, s26, s{sWAVE}\ns_lshl_b32 s26, s26, 13\nv_lshl_add_u32 v5, v255, 7, s26\nv_add_u32 v6, 0x200000, v5\nv_add_u32 v7, 0x400000, v5\ns_waitcnt lgkmcnt(0)')
    for w in which:
        b,n={'x':(36,2621440),'u':(38,2621440),'o':(66,5242880)}[w]
        A.srd(S_T0,b,n)
        for k in range(2 if n<4000000 else 3): A(f'buffer_load_dword v253, v{5+k}, {T0}, 0 offen')
```

```python
import sys
from common import *
import chain, qkv, att, s4, ma
NAME='concat_heads__memory_aug_recurrent_mem_tr__ssm_conv_s4__prompt'
def gen(diag=False, force_fill=0, stop=0, probe=9, qkw={}, s4first=0, wdelay=0, codepre=1, pf=('x','ou'), rot=0, **kw):
    A=Asm()
    sTEAM,sRANK=chain.sTEAM,chain.sRANK
    if diag: A('s_memrealtime s[100:101]')
    A('s_cmp_ge_u32 s2, 256\ns_cbranch_scc1 L_end')
    A('s_load_dwordx4 s[4:7], s[0:1], 136')
    A('s_getreg_b32 s23, hwreg(HW_REG_XCC_ID)\ns_and_b32 s23, s23, 15')
    if force_fill: A(f's_add_u32 s23, s23, s2\ns_lshr_b32 s24, s2, 3\ns_add_u32 s23, s23, s24\ns_and_b32 s23, s23, 15')
    A('v_lshrrev_b32 v1, 6, v0\nv_and_b32 v255, 63, v0')
    A('s_and_b32 s24, s23, 1\ns_lshl_b32 s24, s24, 6\ns_lshr_b32 s25, s23, 1\ns_lshl_b32 s25, s25, 2\ns_add_u32 s25, s25, 128\ns_cmp_lt_u32 s23, 2\ns_cselect_b32 s25, 0, s25\ns_add_u32 s24, s24, s25')
    A('v_readfirstlane_b32 s22, v1\nv_mov_b32 v2, 0\ns_waitcnt lgkmcnt(0)')
    A.srd(S_WS,6,WS_SIZE); A.srd(S_DBG,4,256)
    A.c('register on the counter of the die this workgroup runs on; pull a slice of the code into L2 meanwhile')
    A(f's_cmp_lg_u32 s22, 0\ns_cbranch_scc1 L_noat\ns_mov_b64 exec, 1\nv_mov_b32 v3, 1\nbuffer_atomic_add v3, off, {DBG}, s24 sc0 sc1\ns_mov_b64 exec, -1')
    if codepre:
        A('s_getpc_b64 s[26:27]\ns_bfe_u32 s28, s2, 0x30003\ns_lshl_b32 s28, s28, 13\nv_lshl_add_u32 v4, v255, 7, s28\nv_min_u32 v4, L_end-.-16, v4\nglobal_load_dword v254, v4, s[26:27]')
    A(f'L_noat:\ns_mov_b32 s{chain.sPOL}, 1\ns_cmp_lt_u32 s23, 6\ns_cbranch_scc1 L_pre2\ns_cmp_lg_u32 s22, 1\ns_cbranch_scc1 L_pre2')
    A.c('which of two adjacent 8 KiB blocks is further from this die, i.e. nearer to dies 0/1? (places the cross-die hand-off area; speed only)')
    A(f's_and_b32 s26, s2, 127\ns_lshl_b32 s26, s26, 14\ns_add_u32 s26, s26, {WS_AGR+6144}\ns_add_u32 s26, s6, s26\ns_addc_u32 s27, s7, 0')
    A('s_load_dword s28, s[26:27], 0 glc\ns_load_dword s29, s[26:27], 8192 glc\ns_mov_b32 s34, 0\ns_mov_b32 s31, 0\ns_mov_b32 s33, -1\ns_mov_b32 s35, -1\ns_waitcnt lgkmcnt(0)\ns_xor_b32 s29, s29, s28')
    A.c('alternating rounds through the same code, the first only warms it; keep the shortest spin of each block')
    A('L_pro:\ns_cmp_eq_u32 s34, 0\ns_cselect_b32 s32, 400, 0\ns_not_b32 s30, s28\ns_load_dword s30, s[26:27], s31 glc')
    A('L_pr:\ns_add_u32 s32, s32, 1\ns_cmp_eq_u32 s30, s28\ns_cbranch_scc1 L_pre\ns_cmp_lt_u32 s32, 500\ns_cbranch_scc1 L_pr')
    A(f'L_pre:\ns_waitcnt lgkmcnt(0)\ns_min_u32 s32, s32, s33\ns_mov_b32 s33, s35\ns_mov_b32 s35, s32\ns_xor_b32 s28, s28, s29\ns_xor_b32 s31, s31, 8192\ns_add_u32 s34, s34, 1\ns_cmp_lt_u32 s34, {probe}\ns_cbranch_scc1 L_pro')
    A(f's_cmp_gt_u32 s35, s33\ns_cselect_b32 s{chain.sPOL}, 1, 0x10001')
    A('L_pre2:')
    chain.chain_pre(A)
    A(f'L_nopr:\ns_cmp_lg_u32 s22, 0\ns_cbranch_scc1 L_reg\ns_waitcnt vmcnt({1 if codepre else 0})\ns_mov_b64 exec, 1\nds_write_b32 v2, v3\ns_mov_b64 exec, -1\ns_waitcnt lgkmcnt(0)')
    A(f'L_reg:\ns_barrier\nds_read_b32 v3, v2\ns_waitcnt lgkmcnt(0)\nv_readfirstlane_b32 s{sRANK}, v3\ns_mov_b32 s{sTEAM}, s23')
    A(f's_cmp_ge_u32 s23, 8\ns_cbranch_scc1 L_other\ns_cmp_lt_u32 s{sRANK}, 32\ns_cbranch_scc1 L_seat')
    A('L_other:')
    A.c('no seat on this die: wait until all 256 workgroups have registered, then take one of the seats left open')
    A('v_and_b32 v4, 1, v255\nv_lshlrev_b32 v4, 6, v4\nv_lshrrev_b32 v5, 1, v255\nv_lshlrev_b32 v5, 2, v5\nv_add_u32 v5, 128, v5\nv_cmp_gt_u32 vcc, 2, v255\ns_mov_b32 s26, 0\ns_nop 0\nv_cndmask_b32 v5, v5, v2, vcc\nv_add_u32 v4, v4, v5')
    A(f'L_cnt:\ns_mov_b64 exec, 0xffff\nbuffer_load_dword v5, v4, {DBG}, 0 offen sc1\ns_add_u32 s26, s26, 1\ns_cmp_gt_u32 s26, 200000\ns_cbranch_scc1 L_end\ns_waitcnt vmcnt(0)\ns_mov_b64 exec, -1')
    A('s_mov_b32 s27, 0\ns_mov_b32 s28, 0')
    for x in range(16):
        A(f'v_readlane_b32 s29, v5, {x}\ns_add_u32 s27, s27, s29')
        if x<8: A(f's_min_u32 s{30+x}, s29, 32\ns_sub_u32 s29, s29, s{30+x}')
        A(f's_cmp_gt_u32 s23, {x}\ns_cselect_b32 s29, s29, 0\ns_add_u32 s28, s28, s29')
    A('s_cmp_ge_u32 s27, 256\ns_cbranch_scc1 L_cntok\ns_sleep 4\ns_branch L_cnt\nL_cntok:')
    A(f's_cmp_lt_u32 s23, 8\ns_cselect_b32 s29, 32, 0\ns_sub_u32 s29, s{sRANK}, s29\ns_add_u32 s28, s28, s29')
    for t in range(8):
        A(f's_add_u32 s{sRANK}, s{30+t}, s28\ns_mov_b32 s{sTEAM}, {t}\ns_cmp_lt_u32 s{sRANK}, 32\ns_cbranch_scc1 L_seat\ns_sub_u32 s28, s{sRANK}, 32')
    A('s_branch L_end\nL_seat:')
    A(f's_cmp_lt_u32 s{sTEAM}, 2\ns_cbranch_scc1 L_chain\ns_sub_u32 s20, s20, 2\ns_lshl_b32 s20, s20, 5\ns_add_u32 s21, s21, s20')
    A('s_and_b32 s20, s21, 1\ns_mul_i32 s20, s20, 96\ns_lshr_b32 s23, s21, 1\ns_add_u32 s20, s20, s23\ns_barrier')
    def dg(k):
        if diag: A(f's_memrealtime s[{90+2*k}:{91+2*k}]')
    A('s_cmp_lt_u32 s21, 128\ns_cbranch_scc1 L_noarm\ns_bfe_u32 s24, s21, 0x10005\ns_and_b32 s25, s21, 31\nv_lshlrev_b32 v4, 4, v255')
    qkv.prefetch_code(A,pf[0])
    chain.arm_code(A,24,25,(26,27,28),4,8)
    A(f's_waitcnt vmcnt(0)\ns_barrier\ns_cmp_lg_u32 s22, 1\ns_cbranch_scc1 L_noar2\ns_mov_b64 exec, 1\nv_mov_b32 v8, s{chain.sPOL}\nbuffer_atomic_add v8, off, {DBG}, 0 offset:{DBG_INIT} sc1\ns_mov_b64 exec, -1\nL_noar2:')
    if pf[1]: qkv.prefetch_code(A,pf[1])
    A('L_noarm:')
    for _ in range(wdelay): A('s_sleep 40')
    dg(0)
    if s4first:
        A('s_cmp_lt_u32 s21, 128\ns_cbranch_scc1 L_qkv\ns_sub_u32 s20, s21, 32\ns_mov_b32 s23, 0\ns_branch L_s4\nL_qkv:')
        A('s_and_b32 s20, s21, 1\ns_mul_i32 s20, s20, 96\ns_lshr_b32 s23, s21, 1\ns_add_u32 s20, s20, s23')
    qkv.qkv_code(A,flags=True,diag=diag,**qkw)
    dg(1)
    if diag: A('s_memtime s[88:89]\ns_waitcnt lgkmcnt(0)\ns_sub_u32 s98, s88, s86')
    if stop==1: A('s_branch L_fin')
    A('s_cmp_lt_u32 s21, 64\ns_cbranch_scc1 L_ma')
    A('s_and_b32 s23, s21, 31\ns_lshr_b32 s24, s21, 5\ns_sub_u32 s24, s24, 2\ns_cmp_lt_u32 s23, 20\ns_cbranch_scc1 L_out')
    per=24 if s4first else 40
    A(f's_mul_i32 s24, s24, {per}\ns_add_u32 s20, s24, s23\ns_sub_u32 s20, s20, 20\ns_add_u32 s23, s24, {per}\nL_s4:')
    s4.s4_code(A,idreg=20)
    A('s_add_u32 s20, s20, 12\ns_cmp_lt_u32 s20, s23\ns_cbranch_scc1 L_s4')
    if s4first: A('s_cmp_eq_u32 s23, 0\ns_cbranch_scc1 L_qkv')
    A('s_branch L_fin\nL_ma:')
    ma.ma_code(A,fail='L_fin',polfix=kw.get('polfix'))
    A('s_branch L_fin\nL_out:\ns_mul_i32 s24, s24, 20\ns_add_u32 s20, s24, s23')
    att.out_code(A,flags=True,fail='L_fin',nset=4)
    A('s_branch L_fin\nL_chain:')
    if rot: A(f's_add_u32 s21, s21, {rot}\ns_and_b32 s21, s21, 31')
    dg(0)
    chain.chain_code(A,fused=True,diag=diag,**kw)
    if diag: A(f's_lshl_b32 s23, s{sTEAM}, 5\ns_add_u32 s21, s{sRANK}, s23\ns_add_u32 s21, s21, 192')
    A('L_fin:')
    if diag:
        dg(3)
        A('s_mov_b64 exec, -1\ns_waitcnt vmcnt(0) lgkmcnt(0)')
        A('v_mov_b32 v16, s100\nv_mov_b32 v17, s90\nv_mov_b32 v18, s92\nv_mov_b32 v19, s94\nv_mov_b32 v20, s96\nv_mov_b32 v21, s34\nv_mov_b32 v22, s2\nv_mov_b32 v23, s98')
        A(f's_lshl_b32 s3, s21, 2\ns_add_u32 s3, s3, s22\ns_lshl_b32 s3, s3, 5\ns_add_u32 s3, s3, {WS_DIAG}\ns_mov_b64 exec, 1')
        A(f'buffer_store_dwordx4 v[16:19], off, {WS}, s3\nbuffer_store_dwordx4 v[20:23], off, {WS}, s3 offset:16')
        if diag==2:
            A('s_load_dwordx2 s[4:5], s[0:1], 136\ns_waitcnt lgkmcnt(0)'); A.srd(S_DBG,4,256)
            A(f'v_not_b32 v16, v16\nbuffer_atomic_umax v16, off, {DBG}, 0 offset:12\nbuffer_atomic_umax v20, off, {DBG}, 0 offset:24\nv_mov_b32 v24, s8\nbuffer_store_dword v24, off, {DBG}, 0 offset:4')
            A(f's_cmp_lt_u32 s21, 192\ns_cbranch_scc1 L_dw\nbuffer_store_dword v23, off, {DBG}, 0 offset:8\nbuffer_atomic_umax v19, off, {DBG}, 0 offset:16\nbuffer_atomic_umax v20, off, {DBG}, 0 offset:20\nbuffer_atomic_umax v17, off, {DBG}, 0 offset:36\nbuffer_atomic_umax v21, off, {DBG}, 0 offset:40\ns_branch L_end')
            A(f'L_dw:\nbuffer_atomic_umax v18, off, {DBG}, 0 offset:28\nbuffer_atomic_umax v17, off, {DBG}, 0 offset:32')
        if kw.get('trace'):
            A(f's_cmp_lt_u32 s21, 192\ns_cbranch_scc1 L_end\ns_mov_b64 exec, -1\ns_barrier\nds_read_b128 v[16:19], v0 offset:7168\ns_lshl_b32 s3, s21, 10\ns_add_u32 s3, s3, {WS_DIAG+0x100000}\ns_waitcnt lgkmcnt(0)\nbuffer_store_dwordx4 v[16:19], v0, {WS}, s3 offen')
    A('L_end:\ns_endpgm')
    hdr=''.join(l for l in open(f'cdna_kernels/{NAME}.s.ref') if l.startswith(';') and '@launch' not in l)
    return hdr+wrap(NAME+'_kernel',A.text(),256,256,163840,vgpr=512,accum=256)
if __name__=='__main__':
    kw=eval(sys.argv[2]) if len(sys.argv)>2 else {}
    open(sys.argv[1],'w').write(gen(**kw))
```

```python
import sys
from common import *
import chain, qkv, att, s4, ma
NAME='concat_heads__memory_aug_recurrent_mem_tr__ssm_conv_s4__prompt'
def gen(diag=False, force_fill=0, stop=0, probe=9, qkw={}, s4first=0, wdelay=0, codepre=1, pf=('x','ou'), rot=0, hold=None, **kw):
    A=Asm()
    sTEAM,sRANK=chain.sTEAM,chain.sRANK
    if diag or hold is not None: A('s_memrealtime s[100:101]')
    A('s_cmp_ge_u32 s2, 256\ns_cbranch_scc1 L_end')
    A('s_load_dwordx4 s[4:7], s[0:1], 136')
    A('s_getreg_b32 s23, hwreg(HW_REG_XCC_ID)\ns_and_b32 s23, s23, 15')
    if force_fill: A(f's_add_u32 s23, s23, s2\ns_lshr_b32 s24, s2, 3\ns_add_u32 s23, s23, s24\ns_and_b32 s23, s23, 15')
    A('v_lshrrev_b32 v1, 6, v0\nv_and_b32 v255, 63, v0')
    A('s_and_b32 s24, s23, 1\ns_lshl_b32 s24, s24, 6\ns_lshr_b32 s25, s23, 1\ns_lshl_b32 s25, s25, 2\ns_add_u32 s25, s25, 128\ns_cmp_lt_u32 s23, 2\ns_cselect_b32 s25, 0, s25\ns_add_u32 s24, s24, s25')
    A('v_readfirstlane_b32 s22, v1\nv_mov_b32 v2, 0\ns_waitcnt lgkmcnt(0)')
    A.srd(S_WS,6,WS_SIZE); A.srd(S_DBG,4,256)
    A.c('register on the counter of the die this workgroup runs on; pull a slice of the code into L2 meanwhile')
    A(f's_cmp_lg_u32 s22, 0\ns_cbranch_scc1 L_noat\ns_mov_b64 exec, 1\nv_mov_b32 v3, 1\nbuffer_atomic_add v3, off, {DBG}, s24 sc0 sc1\ns_mov_b64 exec, -1')
    if codepre:
        A('s_getpc_b64 s[26:27]\ns_bfe_u32 s28, s2, 0x30003\ns_lshl_b32 s28, s28, 13\nv_lshl_add_u32 v4, v255, 7, s28\nv_min_u32 v4, L_end-.-16, v4\nglobal_load_dword v254, v4, s[26:27]')
    A(f'L_noat:\ns_mov_b32 s{chain.sPOL}, 1\ns_cmp_lt_u32 s23, 6\ns_cbranch_scc1 L_pre2\ns_cmp_lg_u32 s22, 1\ns_cbranch_scc1 L_pre2')
    A.c('which of two adjacent 8 KiB blocks is further from this die, i.e. nearer to dies 0/1? (places the cross-die hand-off area; speed only)')
    A(f's_and_b32 s26, s2, 127\ns_lshl_b32 s26, s26, 14\ns_add_u32 s26, s26, {WS_AGR+6144}\ns_add_u32 s26, s6, s26\ns_addc_u32 s27, s7, 0')
    A('s_load_dword s28, s[26:27], 0 glc\ns_load_dword s29, s[26:27], 8192 glc\ns_mov_b32 s34, 0\ns_mov_b32 s31, 0\ns_mov_b32 s33, -1\ns_mov_b32 s35, -1\ns_waitcnt lgkmcnt(0)\ns_xor_b32 s29, s29, s28')
    A.c('alternating rounds through the same code, the first only warms it; keep the shortest spin of each block')
    A('L_pro:\ns_cmp_eq_u32 s34, 0\ns_cselect_b32 s32, 400, 0\ns_not_b32 s30, s28\ns_load_dword s30, s[26:27], s31 glc')
    A('L_pr:\ns_add_u32 s32, s32, 1\ns_cmp_eq_u32 s30, s28\ns_cbranch_scc1 L_pre\ns_cmp_lt_u32 s32, 500\ns_cbranch_scc1 L_pr')
    A(f'L_pre:\ns_waitcnt lgkmcnt(0)\ns_min_u32 s32, s32, s33\ns_mov_b32 s33, s35\ns_mov_b32 s35, s32\ns_xor_b32 s28, s28, s29\ns_xor_b32 s31, s31, 8192\ns_add_u32 s34, s34, 1\ns_cmp_lt_u32 s34, {probe}\ns_cbranch_scc1 L_pro')
    A(f's_cmp_gt_u32 s35, s33\ns_cselect_b32 s{chain.sPOL}, 1, 0x10001')
    A('L_pre2:')
    chain.chain_pre(A)
    A(f'L_nopr:\ns_cmp_lg_u32 s22, 0\ns_cbranch_scc1 L_reg\ns_waitcnt vmcnt({1 if codepre else 0})\ns_mov_b64 exec, 1\nds_write_b32 v2, v3\ns_mov_b64 exec, -1\ns_waitcnt lgkmcnt(0)')
    A(f'L_reg:\ns_barrier\nds_read_b32 v3, v2\ns_waitcnt lgkmcnt(0)\nv_readfirstlane_b32 s{sRANK}, v3\ns_mov_b32 s{sTEAM}, s23')
    A(f's_cmp_ge_u32 s23, 8\ns_cbranch_scc1 L_other\ns_cmp_lt_u32 s{sRANK}, 32\ns_cbranch_scc1 L_seat')
    A('L_other:')
    A.c('no seat on this die: wait until all 256 workgroups have registered, then take one of the seats left open')
    A('v_and_b32 v4, 1, v255\nv_lshlrev_b32 v4, 6, v4\nv_lshrrev_b32 v5, 1, v255\nv_lshlrev_b32 v5, 2, v5\nv_add_u32 v5, 128, v5\nv_cmp_gt_u32 vcc, 2, v255\ns_mov_b32 s26, 0\ns_nop 0\nv_cndmask_b32 v5, v5, v2, vcc\nv_add_u32 v4, v4, v5')
    A(f'L_cnt:\ns_mov_b64 exec, 0xffff\nbuffer_load_dword v5, v4, {DBG}, 0 offen sc1\ns_add_u32 s26, s26, 1\ns_cmp_gt_u32 s26, 200000\ns_cbranch_scc1 L_end\ns_waitcnt vmcnt(0)\ns_mov_b64 exec, -1')
    A('s_mov_b32 s27, 0\ns_mov_b32 s28, 0')
    for x in range(16):
        A(f'v_readlane_b32 s29, v5, {x}\ns_add_u32 s27, s27, s29')
        if x<8: A(f's_min_u32 s{30+x}, s29, 32\ns_sub_u32 s29, s29, s{30+x}')
        A(f's_cmp_gt_u32 s23, {x}\ns_cselect_b32 s29, s29, 0\ns_add_u32 s28, s28, s29')
    A('s_cmp_ge_u32 s27, 256\ns_cbranch_scc1 L_cntok\ns_sleep 4\ns_branch L_cnt\nL_cntok:')
    A(f's_cmp_lt_u32 s23, 8\ns_cselect_b32 s29, 32, 0\ns_sub_u32 s29, s{sRANK}, s29\ns_add_u32 s28, s28, s29')
    for t in range(8):
        A(f's_add_u32 s{sRANK}, s{30+t}, s28\ns_mov_b32 s{sTEAM}, {t}\ns_cmp_lt_u32 s{sRANK}, 32\ns_cbranch_scc1 L_seat\ns_sub_u32 s28, s{sRANK}, 32')
    A('s_branch L_end\nL_seat:')
    A(f's_cmp_lt_u32 s{sTEAM}, 2\ns_cbranch_scc1 L_chain\ns_sub_u32 s20, s20, 2\ns_lshl_b32 s20, s20, 5\ns_add_u32 s21, s21, s20')
    A('s_and_b32 s20, s21, 1\ns_mul_i32 s20, s20, 96\ns_lshr_b32 s23, s21, 1\ns_add_u32 s20, s20, s23\ns_barrier')
    def dg(k):
        if diag: A(f's_memrealtime s[{90+2*k}:{91+2*k}]')
    A('s_cmp_lt_u32 s21, 128\ns_cbranch_scc1 L_noarm\ns_bfe_u32 s24, s21, 0x10005\ns_and_b32 s25, s21, 31\nv_lshlrev_b32 v4, 4, v255')
    qkv.prefetch_code(A,pf[0])
    chain.arm_code(A,24,25,(26,27,28),4,8)
    A(f's_waitcnt vmcnt(0)\ns_barrier\ns_cmp_lg_u32 s22, 1\ns_cbranch_scc1 L_noar2\ns_mov_b64 exec, 1\nv_mov_b32 v8, s{chain.sPOL}\nbuffer_atomic_add v8, off, {DBG}, 0 offset:{DBG_INIT} sc1\ns_mov_b64 exec, -1\nL_noar2:')
    if pf[1]: qkv.prefetch_code(A,pf[1])
    A('L_noarm:')
    for _ in range(wdelay): A('s_sleep 40')
    dg(0)
    if s4first:
        A('s_cmp_lt_u32 s21, 128\ns_cbranch_scc1 L_qkv\ns_sub_u32 s20, s21, 32\ns_mov_b32 s23, 0\ns_branch L_s4\nL_qkv:')
        A('s_and_b32 s20, s21, 1\ns_mul_i32 s20, s20, 96\ns_lshr_b32 s23, s21, 1\ns_add_u32 s20, s20, s23')
    qkv.qkv_code(A,flags=True,diag=diag,**qkw)
    dg(1)
    if diag: A('s_memtime s[88:89]\ns_waitcnt lgkmcnt(0)\ns_sub_u32 s98, s88, s86')
    if stop==1: A('s_branch L_fin')
    A('s_cmp_lt_u32 s21, 64\ns_cbranch_scc1 L_ma')
    A('s_and_b32 s23, s21, 31\ns_lshr_b32 s24, s21, 5\ns_sub_u32 s24, s24, 2\ns_cmp_lt_u32 s23, 20\ns_cbranch_scc1 L_out')
    per=24 if s4first else 40
    A(f's_mul_i32 s24, s24, {per}\ns_add_u32 s20, s24, s23\ns_sub_u32 s20, s20, 20\ns_add_u32 s23, s24, {per}\nL_s4:')
    s4.s4_code(A,idreg=20)
    A('s_add_u32 s20, s20, 12\ns_cmp_lt_u32 s20, s23\ns_cbranch_scc1 L_s4')
    if s4first: A('s_cmp_eq_u32 s23, 0\ns_cbranch_scc1 L_qkv')
    A('s_branch L_fin\nL_ma:')
    ma.ma_code(A,fail='L_fin',polfix=kw.get('polfix'))
    A('s_branch L_fin\nL_out:\ns_mul_i32 s24, s24, 20\ns_add_u32 s20, s24, s23')
    att.out_code(A,flags=True,fail='L_fin',nset=4)
    A('s_branch L_fin\nL_chain:')
    if rot: A(f's_add_u32 s21, s21, {rot}\ns_and_b32 s21, s21, 31')
    dg(0)
    chain.chain_code(A,fused=True,diag=diag,**kw)
    if diag: A(f's_lshl_b32 s23, s{sTEAM}, 5\ns_add_u32 s21, s{sRANK}, s23\ns_add_u32 s21, s21, 192')
    A('L_fin:')
    if hold is not None:
        if hold>=0: A(f's_getreg_b32 s3, hwreg(HW_REG_XCC_ID)\ns_and_b32 s3, s3, 15\ns_cmp_lg_u32 s3, {hold}\ns_cbranch_scc1 L_end')
        A('L_hold:\ns_sleep 1\ns_memrealtime s[96:97]\ns_waitcnt lgkmcnt(0)\ns_sub_u32 s96, s96, s100\ns_cmp_lt_u32 s96, 20000\ns_cbranch_scc1 L_hold')
    if diag:
        dg(3)
        A('s_mov_b64 exec, -1\ns_waitcnt vmcnt(0) lgkmcnt(0)')
        A('v_mov_b32 v16, s100\nv_mov_b32 v17, s90\nv_mov_b32 v18, s92\nv_mov_b32 v19, s94\nv_mov_b32 v20, s96\nv_mov_b32 v21, s34\nv_mov_b32 v22, s2\nv_mov_b32 v23, s98')
        A(f's_lshl_b32 s3, s21, 2\ns_add_u32 s3, s3, s22\ns_lshl_b32 s3, s3, 5\ns_add_u32 s3, s3, {WS_DIAG}\ns_mov_b64 exec, 1')
        A(f'buffer_store_dwordx4 v[16:19], off, {WS}, s3\nbuffer_store_dwordx4 v[20:23], off, {WS}, s3 offset:16')
        if diag==2:
            A('s_load_dwordx2 s[4:5], s[0:1], 136\ns_waitcnt lgkmcnt(0)'); A.srd(S_DBG,4,256)
            A(f'v_not_b32 v16, v16\nbuffer_atomic_umax v16, off, {DBG}, 0 offset:12\nbuffer_atomic_umax v20, off, {DBG}, 0 offset:24\nv_mov_b32 v24, s8\nbuffer_store_dword v24, off, {DBG}, 0 offset:4')
            A(f's_cmp_lt_u32 s21, 192\ns_cbranch_scc1 L_dw\nbuffer_store_dword v23, off, {DBG}, 0 offset:8\nbuffer_atomic_umax v19, off, {DBG}, 0 offset:16\nbuffer_atomic_umax v20, off, {DBG}, 0 offset:20\nbuffer_atomic_umax v17, off, {DBG}, 0 offset:36\nbuffer_atomic_umax v21, off, {DBG}, 0 offset:40\ns_branch L_end')
            A(f'L_dw:\nbuffer_atomic_umax v18, off, {DBG}, 0 offset:28\nbuffer_atomic_umax v17, off, {DBG}, 0 offset:32')
        if kw.get('trace'):
            A(f's_cmp_lt_u32 s21, 192\ns_cbranch_scc1 L_end\ns_mov_b64 exec, -1\ns_barrier\nds_read_b128 v[16:19], v0 offset:7168\ns_lshl_b32 s3, s21, 10\ns_add_u32 s3, s3, {WS_DIAG+0x100000}\ns_waitcnt lgkmcnt(0)\nbuffer_store_dwordx4 v[16:19], v0, {WS}, s3 offen')
    A('L_end:\ns_endpgm')
    hdr=''.join(l for l in open(f'cdna_kernels/{NAME}.s.ref') if l.startswith(';') and '@launch' not in l)
    return hdr+wrap(NAME+'_kernel',A.text(),256,256,163840,vgpr=512,accum=256)
if __name__=='__main__':
    kw=eval(sys.argv[2]) if len(sys.argv)>2 else {}
    open(sys.argv[1],'w').write(gen(**kw))
```

```python
from common import *
from att import poll, TMO
import qkv
sWAVE=22
def ma_code(A, idreg=21, sfx='m', fail='L_end', polfix=None, sleep=2):
    L=lambda n: f'L_{n}{sfx}'
    sH,sSEG,sT,sT2,sKV,sQ,sM,sO,sC,sN,sFO,sM0,sPOL,sQT,sEH=24,25,26,27,28,29,30,31,32,33,34,35,52,53,54
    sMK=36
    vL=255
    WV=lambda n: ('a',160+4*n) if n<24 else ('v',176+4*(n-24))
    Qr,Kr,Vr,Xr,VM,S,PM,P,O,MB,AC=16,32,64,80,96,100,112,124,128,144,160
    L_X=10240; L_V=14336
    A(f's_lshr_b32 s{sH}, s{idreg}, 1\ns_and_b32 s{sSEG}, s{idreg}, 1\ns_and_b32 s{sQT}, s{sWAVE}, 1\ns_lshr_b32 s{sEH}, s{sWAVE}, 1')
    A('s_load_dwordx2 s[36:37], s[0:1], 32\ns_waitcnt lgkmcnt(0)')
    A.srd(S_T0,36,5242880)
    qkv.w_issue(A,sH,sT,sT2,sM0)
    A(f'buffer_load_dword v10, off, {DBG}, 0 offset:{DBG_INIT} sc1')
    A(f's_mul_i32 s{sT2}, s{sSEG}, 96\ns_add_u32 s{sT2}, s{sT2}, s{sH}\nv_lshl_add_u32 v11, v{vL}, 5, s{sT2}\nv_lshlrev_b32 v11, 7, v11\nv_add_u32 v11, {FL_QKV}, v11\ns_mov_b32 s{sN}, 32')
    poll(A,L('pq'),fail,f'buffer_load_dword v12, v11, {WS}, 0 offen sc1',12,sN,sT,mask=7)
    A(f'v_readfirstlane_b32 s{sT}, v10\ns_lshr_b32 s{sT}, s{sT}, 16\ns_cmp_gt_u32 s{sT}, 32\ns_cselect_b32 s{sPOL}, 8192, 0')
    if polfix is not None: A(f's_mov_b32 s{sPOL}, {polfix*8192}')
    A(f's_add_u32 s{sPOL}, s{sPOL}, {WS_AGR}')
    A('s_barrier')
    qkv.w_read(A,WV)
    A(f'v_lshlrev_b32 v0, 4, v{vL}\nv_lshlrev_b32 v3, 2, v2\ns_lshl_b32 s{sT}, s{sQT}, 4\nv_add_u32 v10, s{sT}, v1')
    for r in range(8): A(f'v_add_u32 v4, {(r&3)+16*(r>>2)}, v3\nv_cmp_le_u32 s[{sMK+2*r}:{sMK+2*r+1}], v4, v10')
    A(f'v_mov_b32 v5, {hex(0xd028965f)}\ns_mov_b32 s{sC}, {hex(0x3e0293ee)}')
    A('v_and_b32 v3, 13, v1\nv_lshlrev_b32 v3, 4, v3\nv_and_b32 v4, 1, v2\nv_lshrrev_b32 v10, 1, v2')
    A('v_lshl_add_u32 v6, v4, 8, v3\nv_lshl_add_u32 v6, v10, 5, v6\nv_lshl_add_u32 v7, v10, 8, v3\nv_lshl_add_u32 v7, v4, 5, v7')
    A(f's_lshl_b32 s{sT}, s{sWAVE}, 10\nv_add_u32 v3, s{sT}, v0\nv_lshrrev_b32 v4, 2, v3\nv_lshrrev_b32 v12, 1, v3\ns_lshl_b32 s{sT}, s{sEH}, 10\nv_lshrrev_b32 v13, 1, v0\nv_add_u32 v13, s{sT}, v13')
    for r in range(PM,PM+12): A(f'v_mov_b32 v{r}, 0')
    A(f's_lshl_b32 s{sFO}, s{sSEG}, 7\ns_lshl_b32 s{sT}, s{sH}, 2\ns_add_u32 s{sFO}, s{sFO}, s{sT}\ns_add_u32 s{sFO}, s{sFO}, {FL_O}')
    A(f's_lshl_b32 s55, s{sSEG}, 5\ns_add_u32 s55, s55, s{sH}\ns_lshl_b32 s55, s55, 7\ns_add_u32 s55, s55, {FL_KVM-WS_AGR}\ns_add_u32 s55, s55, s{sPOL}')
    A('s_waitcnt lgkmcnt(0)')
    sNX,sCH=56,57
    def bases():
        A(f's_mul_i32 s{sKV}, s{sNX}, {SEGB}\ns_lshl_b32 s{sT}, s{sH}, 14\ns_add_u32 s{sKV}, s{sKV}, s{sT}')
        A(f's_lshl_b32 s{sT}, s{sNX}, 5\ns_add_u32 s{sT}, s{sT}, s{sH}\ns_lshl_b32 s58, s{sT}, 13\ns_lshl_b32 s{sT}, s{sQT}, 10\ns_add_u32 s58, s58, s{sT}\ns_add_u32 s58, s58, {WS_Q}')
        A(f's_lshl_b32 s59, s{sEH}, 13\ns_add_u32 s59, s59, s{sKV}')
    def ldq():
        for kk in range(4):
            A(f'buffer_load_dwordx4 v[{Qr+4*kk}:{Qr+4*kk+3}], v0, {WS}, s58 offen offset:{(kk&1)*2048} sc1')
            if kk==1: A('s_add_u32 s58, s58, 4096')
    def ldk():
        o=[]
        for kk in range(4):
            for t in range(2): o.append(f'buffer_load_dwordx4 v[{Kr+8*kk+4*t}:{Kr+8*kk+4*t+3}], v0, {WS}, s{sKV} offen offset:{1024*t} sc1'+(f'\ns_add_u32 s{sKV}, s{sKV}, 4096' if t else ''))
        return o
    def ldv():
        for i in range(4):
            A(f'buffer_load_dwordx4 v[{Vr+4*i}:{Vr+4*i+3}], v0, {WS}, s59 offen offset:{2048+1024*(i&1)} sc1')
            if i==1: A('s_add_u32 s59, s59, 4096')
    def flag(lab):
        A(f's_cmp_lg_u32 s{sWAVE}, 0\ns_cbranch_scc1 {lab}\ns_lshr_b32 s{sT}, s{sSEG}, 1\nv_mov_b32 v10, s{sT}\ns_mov_b64 exec, 1\nbuffer_store_dword v10, off, {WS}, s{sFO} sc1\ns_mov_b64 exec, -1\n{lab}:')
    A(f's_mov_b32 s{sNX}, s{sSEG}\ns_mov_b32 s{sCH}, 0\nv_mov_b32 v14, 0')
    bases()
    for z in ldk(): A(z)
    ldq(); ldv()
    A(f'{L("loop")}:')
    A(f's_lshl_b32 s{sO}, s{sSEG}, 1\ns_add_u32 s{sO}, s{sO}, s{sQT}\ns_lshl_b32 s{sO}, s{sO}, 5\ns_add_u32 s{sO}, s{sO}, s{sH}\ns_lshl_b32 s{sO}, s{sO}, 1\ns_add_u32 s{sO}, s{sO}, s{sEH}\ns_lshl_b32 s{sO}, s{sO}, 11\ns_add_u32 s{sO}, s{sO}, {WS_O}')
    A(f's_lshl_b32 s{sM}, s{sSEG}, 14\ns_add_u32 s{sM}, s{sM}, s{sPOL}')
    A(f's_add_u32 s{sNX}, s{sSEG}, 2\ns_cmp_lt_u32 s{sNX}, 64\ns_cselect_b32 s{sNX}, s{sNX}, s{sSEG}'); bases()
    A(f's_add_u32 s{sN}, s{sSEG}, 1\ns_min_u32 s{sN}, s{sN}, 63\ns_cmp_ge_u32 s{sCH}, s{sN}\ns_cbranch_scc1 {L("go")}')
    A('s_waitcnt vmcnt(4)\ns_barrier'); flag(L('f1'))
    A(f's_cmp_lg_u32 s{sWAVE}, 0\ns_cbranch_scc1 {L("nw")}')
    poll(A,L('pm'),fail,f'buffer_load_dword v10, off, {WS}, s55 sc1',10,sN,sT,mask=1,sleep=sleep)
    A(f's_mov_b64 exec, 1\nds_write_b32 v14, v10 offset:{L_V+2048}\ns_mov_b64 exec, -1\ns_waitcnt lgkmcnt(0)')
    A(f'{L("nw")}:\ns_barrier\nds_read_b32 v10, v14 offset:{L_V+2048}\ns_waitcnt lgkmcnt(0)\nv_readfirstlane_b32 s{sCH}, v10')
    A(f'{L("go")}:')
    def mf(d,a,b,first): A(f'v_mfma_f32_16x16x32_bf16 v[{d}:{d+3}], {a}, {b}, '+('0' if first else f'v[{d}:{d+3}]'))
    vv=lambda r: f'v[{r}:{r+3}]'
    T0_,T1_,T2_=S,S+4,S+8
    A(f's_add_u32 s{sT}, s{sM}, 0x100000\ns_add_u32 s{sT2}, s{sM}, 4096\ns_add_u32 s{sQ}, s{sT}, 4096\ns_mov_b32 s{sN}, 0')
    ld=[f'buffer_load_dwordx4 v[{MB}:{MB+3}], v3, {WS}, s{sM} offen sc1',f'buffer_load_dwordx4 v[{MB+4}:{MB+7}], v3, {WS}, s{sT} offen sc1',f'buffer_load_dword v{MB+8}, v4, {WS}, s{sT2} offen sc1',f'buffer_load_dword v{MB+9}, v4, {WS}, s{sQ} offen sc1']
    for z in ld: A(z)
    A('s_waitcnt vmcnt(8)')
    for kk in range(4): mf(T1_,vv(Kr+8*kk),vv(Qr+4*kk),kk==0); mf(T2_,vv(Kr+8*kk+4),vv(Qr+4*kk),kk==0)
    A(f'{L("ck")}:\ns_waitcnt vmcnt(0)\nv_max3_u32 v10, v{MB}, v{MB+1}, v{MB+2}')
    for k in range(3,9,2): A(f'v_max3_u32 v10, v10, v{MB+k}, v{MB+k+1}')
    A(f'v_max_u32 v10, v10, v{MB+9}\nv_cmp_eq_u32 vcc, -1, v10\ns_cbranch_vccz {L("okm")}')
    for z in ld: A(z)
    A(f's_add_u32 s{sN}, s{sN}, 1\ns_cmp_gt_u32 s{sN}, {TMO}\ns_cbranch_scc1 {fail}\ns_branch {L("ck")}\n{L("okm")}:')
    A(f'ds_write_b128 v3, v[{MB}:{MB+3}]\nds_write_b128 v3, v[{MB+4}:{MB+7}] offset:5120\nds_write_b32 v4, v{MB+8} offset:4096\nds_write_b32 v4, v{MB+9} offset:{5120+4096}')
    for r in range(8): A(f'v_cndmask_b32 v{T1_+r}, v5, v{T1_+r}, s[{sMK+2*r}:{sMK+2*r+1}]')
    A('s_waitcnt lgkmcnt(0)\ns_barrier')
    lg=Q(); side=ldk()
    def rd(kk):
        F=kk>>1; b=MB+4*(kk%4)
        A(f'ds_read_b128 v[{b}:{b+3}], v{7 if F%5==4 else 6} offset:{F*1024+(kk&1)*512}'); lg.push(kk)
    for kk in range(3): rd(kk)
    flag(L('f2'))
    for kk in range(20):
        A(f's_waitcnt lgkmcnt({lg.wait(kk)})')
        x=vv(MB+4*(kk%4))
        for T in range(2):
            mf(AC+4*T,f'a[{(kk*2+T)*4}:{(kk*2+T)*4+3}]',x,kk==0)
            if T==0 and kk+3<20: rd(kk+3)
        for T in range(2):
            k_,r=WV(kk*2+T); mf(AC+8+4*T,x,f'{k_}[{r}:{r+3}]',kk==0)
            if T==0 and kk%2==0 and side: A(side.pop(0))
    A('s_nop 4')
    for h in range(4): cvt(A,Xr+h,AC+2*h,AC+2*h+1)
    A(f'ds_write_b128 v3, v[{Xr}:{Xr+3}] offset:{L_X}')
    cvt(A,VM,AC+8,AC+9); cvt(A,VM+1,AC+12,AC+13)
    A(f'ds_write_b64 v12, v[{VM}:{VM+1}] offset:{L_V}\ns_waitcnt lgkmcnt(0)\ns_barrier')
    for kk in range(4): A(f'ds_read_b128 v[{Xr+4*kk}:{Xr+4*kk+3}], v0 offset:{L_X+1024*kk}')
    for i in range(2): A(f'ds_read_b64 v[{VM+2*i}:{VM+2*i+1}], v13 offset:{L_V+512*i}')
    for kk in range(4):
        A(f's_waitcnt lgkmcnt({5-kk})'); mf(T0_,vv(Xr+4*kk),vv(Qr+4*kk),kk==0)
    ldq()
    x=list(range(T1_,T1_+8))+[T0_,T0_+1]; m=10
    A(f'v_max_f32 v{m}, v{x[0]}, v{x[1]}')
    for i in range(2,8,2): A(f'v_max3_f32 v{m}, v{m}, v{x[i]}, v{x[i+1]}')
    A(f's_nop 3\nv_max3_f32 v{m}, v{m}, v{x[8]}, v{x[9]}')
    def xred(op):
        for sw in ('16','32'): A(f'v_mov_b32 v{m+1}, v{m}\ns_nop 1\nv_permlane{sw}_swap_b32 v{m}, v{m+1}\n{op} v{m}, v{m}, v{m+1}')
    xred('v_max_f32')
    A(f'v_mul_f32 v{m}, s{sC}, v{m}')
    for y in x: A(f'v_fma_f32 v{y}, v{y}, s{sC}, -v{m}')
    for y in x: A(f'v_exp_f32 v{y}, v{y}')
    A(f'v_add_f32 v{m}, v{x[0]}, v{x[1]}')
    for y in x[2:]: A(f'v_add_f32 v{m}, v{m}, v{y}')
    xred('v_add_f32')
    A(f'v_rcp_f32 v{m}, v{m}\ns_nop 0')
    for i in range(0,10,2): A(f'v_pk_mul_f32 v[{x[i]}:{x[i]+1}], v[{x[i]}:{x[i]+1}], v[{m}:{m+1}] op_sel_hi:[1,0]')
    for i in range(4): cvt(A,P+i,x[2*i],x[2*i+1])
    cvt(A,PM+2,x[8],x[9]); cvt(A,PM+9,x[8],x[9])
    A('s_waitcnt lgkmcnt(0)')
    win={0:2,1:8,2:0,3:6}
    for et in range(4): mf(O+4*et,vv(Vr+4*et),vv(P),True)
    for et in range(4): mf(O+4*et,vv(VM),vv(PM+win[et]),False)
    A(f's_add_u32 s{sSEG}, s{sSEG}, 2\ns_nop 4')
    for mm in range(2):
        for h in range(4): cvt(A,Xr+4*mm+h,O+8*mm+2*h,O+8*mm+2*h+1)
        A(f'buffer_store_dwordx4 v[{Xr+4*mm}:{Xr+4*mm+3}], v0, {WS}, s{sO} offen offset:{1024*mm} sc1')
    A(f's_cmp_ge_u32 s{sSEG}, 64\ns_cbranch_scc1 {L("done")}')
    ldv()
    A(f's_branch {L("loop")}\n{L("done")}:\ns_waitcnt vmcnt(0)\ns_barrier'); flag(L('f3'))
```

```python
from common import *
sID,sWAVE,sTID=20,22,21
def w_issue(A,sHEAD,sT,sT2,sM0):
    vL=255
    A(f'v_and_b32 v1, 15, v{vL}\nv_lshrrev_b32 v2, 4, v{vL}')
    A('v_lshlrev_b32 v3, 1, v2\nv_xor_b32 v3, v3, v1\nv_lshlrev_b32 v3, 4, v3\nv_lshl_add_u32 v4, v2, 13, v3\nv_xor_b32 v5, 128, v4')
    A(f's_lshl_b32 s{sT}, s{sHEAD}, 8\ns_mul_i32 s{sT2}, s{sWAVE}, {160*8192}\ns_add_u32 s{sT}, s{sT}, s{sT2}\ns_mul_i32 s{sM0}, s{sWAVE}, 40960')
    for i in range(40):
        A(f's_mov_b32 m0, s{sM0}\ns_add_u32 s{sM0}, s{sM0}, 1024')
        A(f'buffer_load_dwordx4 v{4+((i>>1)&1)}, {T0}, s{sT} offen lds\ns_add_u32 s{sT}, s{sT}, 32768')
    A(f'v_bfe_u32 v6, v{vL}, 2, 2\nv_and_b32 v7, 1, v2\nv_lshl_add_u32 v7, v7, 2, v6\nv_lshlrev_b32 v7, 1, v7')
    A(f'v_bfe_u32 v8, v{vL}, 1, 1\ns_lshl_b32 s{sT}, s{sWAVE}, 2\nv_add_u32 v8, s{sT}, v8\nv_xor_b32 v8, v8, v7\nv_lshlrev_b32 v8, 4, v8')
    A(f'v_lshl_add_u32 v9, v2, 3, v6\nv_lshl_add_u32 v8, v9, 8, v8\nv_and_b32 v9, 1, v{vL}\nv_lshl_add_u32 v8, v9, 3, v8\nv_xor_b32 v9, 32, v8')
def w_read(A,dst):
    for kk in range(20):
        if kk and kk%8==0: A('v_add_u32 v8, 0x10000, v8\nv_add_u32 v9, 0x10000, v9')
        for T in range(2):
            for p in range(2):
                k_,r=dst(kk*2+T); r+=2*p
                A(f'ds_read_b64_tr_b16 {k_}[{r}:{r+1}], v{8+T} offset:{((kk%8)*32+4*p)*256}')
def qkv_code(A, flags=False, sfx='q', diag=False, stf='sc1', nost=0, pre=1, prew=0, prewo=1, pfkv='q'):
    L=lambda n: f'L_{n}{sfx}'
    sMAT,sHEAD,sHALF,sT,sT2,sOUT,sOSTR,sX,sIT,sM0,sFL=24,25,26,27,28,29,30,31,32,33,34
    vL=255
    A(f's_cmp_ge_u32 s{sID}, 96\ns_cselect_b32 s{sHALF}, 1, 0\ns_cselect_b32 s{sT}, 96, 0\ns_sub_u32 s{sT}, s{sID}, s{sT}')
    A(f's_lshr_b32 s{sMAT}, s{sT}, 5\ns_and_b32 s{sHEAD}, s{sT}, 31')
    A('s_load_dwordx2 s[36:37], s[0:1], 0\ns_load_dwordx2 s[38:39], s[0:1], 16\ns_load_dwordx4 s[40:43], s[0:1], 24\ns_waitcnt lgkmcnt(0)')
    A(f's_cmp_eq_u32 s{sMAT}, 1\ns_cselect_b32 s40, s42, s40\ns_cselect_b32 s41, s43, s41\ns_cmp_eq_u32 s{sMAT}, 2\ns_cselect_b32 s40, s38, s40\ns_cselect_b32 s41, s39, s41')
    A.srd(S_T0,40,5242880)
    w_issue(A,sHEAD,sT,sT2,sM0)
    if pfkv:
        A(f's_lshl_b32 s{sT}, s21, 2\ns_add_u32 s{sT}, s{sT}, s{sWAVE}\ns_mul_i32 s{sT}, s{sT}, 10240\nv_lshl_add_u32 v26, v{vL}, 7, s{sT}\nv_add_u32 v27, 8192, v26')
        for w in pfkv:
            A.srd(S_T0,{'q':60,'o':66}[w],5242880)
            A(f'buffer_load_dword v28, v26, {T0}, 0 offen\ns_mov_b64 exec, 0xffff\nbuffer_load_dword v28, v27, {T0}, 0 offen\ns_mov_b64 exec, -1')
    A(f's_mul_i32 s{sT}, s{sWAVE}, 640\nv_add_u32 v20, s{sT}, v{vL}\ns_mov_b32 s{sT2}, 52429')
    for ii in range(10):
        A(f'v_mul_lo_u32 v21, v20, s{sT2}\nv_lshrrev_b32 v21, 22, v21\nv_mul_u32_u24 v22, 80, v21\nv_sub_u32 v23, v20, v22\nv_and_b32 v21, 15, v21\nv_xor_b32 v23, v23, v21\nv_add_lshl_u32 v{10+ii}, v22, v23, 4\nv_add_u32 v20, 64, v20')
    A('v_mul_u32_u24 v24, 1280, v1')
    for k in range(4): A(f'v_add_u32 v25, {4*k}, v2\nv_xor_b32 v25, v25, v1\nv_lshl_add_u32 v{20+k}, v25, 4, v24')
    A(f'v_lshlrev_b32 v0, 4, v{vL}')
    A(f's_lshl_b32 s{sT}, s{sHEAD}, 14\ns_lshl_b32 s{sT2}, s{sWAVE}, 12\ns_add_u32 s{sOUT}, s{sT}, s{sT2}\ns_lshl_b32 s{sT}, s{sMAT}, 11\ns_add_u32 s{sT}, s{sOUT}, s{sT}')
    A(f's_lshr_b32 s{sOUT}, s{sOUT}, 1\ns_add_u32 s{sOUT}, s{sOUT}, {WS_Q}\ns_cmp_eq_u32 s{sMAT}, 2\ns_cselect_b32 s{sOUT}, s{sOUT}, s{sT}\ns_mov_b32 s{sT2}, {SEGB}\ns_cselect_b32 s{sOSTR}, 0x40000, s{sT2}')
    A(f's_mul_i32 s{sT}, s{sHALF}, s{sOSTR}\ns_add_u32 s{sOUT}, s{sOUT}, s{sT}\ns_lshl_b32 s{sOSTR}, s{sOSTR}, 1')
    A(f's_mul_i32 s{sX}, s{sHALF}, 40960')
    A(f's_lshl_b32 s{sFL}, s{sID}, 7\ns_add_u32 s{sFL}, s{sFL}, {FL_QKV}')
    A(f's_waitcnt vmcnt({2*len(pfkv)})\ns_barrier')
    w_read(A,lambda n: ('a',4*n))
    A.srd(S_T0,36,2621440)
    A(f's_mul_i32 s{sM0}, s{sWAVE}, 10240')
    A('s_waitcnt lgkmcnt(0)\ns_barrier')
    def dma(ii): return [f's_add_u32 m0, s{sM0}, {ii*1024}', f'buffer_load_dwordx4 v{10+ii}, {T0}, s{sX} offen lds']
    def adv(): return [f's_add_u32 s{sX}, s{sX}, 81920', f's_min_u32 s{sX}, s{sX}, {2621440-40960}', f's_add_u32 s{sM0}, s{sM0}, 40960', f's_cmp_ge_u32 s{sM0}, 163840', f's_cselect_b32 s{sT}, 163840, 0', f's_sub_u32 s{sM0}, s{sM0}, s{sT}']
    if flags: A(f'buffer_load_dword v30, off, {DBG}, 0 offset:{DBG_INIT} sc1')
    for s_ in range(3):
        for ii in range(10):
            d=dma(ii); A(d[0]); A('s_nop 0'); A(d[1])
        for z in adv(): A(z)
    if diag: A('s_memrealtime s[94:95]\ns_memtime s[86:87]')
    A(f's_mov_b32 s{sIT}, 0\ns_waitcnt vmcnt(20)')
    A(f's_cmp_eq_u32 s{sMAT}, 1\ns_cbranch_scc1 {L("v")}')
    XB=32; ACC=64; OUTR=80
    for var in ('k','v'):
        A(f'{L(var)}:')
        A(f's_barrier')
        lg=Q()
        def rd(kk,tt):
            b=XB+8*(kk%4)+4*tt
            A(f'ds_read_b128 v[{b}:{b+3}], v{20+(kk&3)} offset:{(kk>>2)*256+tt*20480}'); lg.push(f'{kk}_{tt}')
        for kk in range(3):
            for tt in range(2): rd(kk,tt)
        if flags:
            A(f's_cmp_lg_u32 s{sWAVE}, 0\ns_cbranch_scc1 {L(var+"nf")}\ns_cmp_lt_u32 s{sIT}, 4\ns_cbranch_scc1 {L(var+"nf")}\ns_cmp_gt_u32 s{sIT}, 4\ns_cbranch_scc1 {L(var+"ni")}')
            A(f's_mov_b32 s{sT}, 0\ns_branch {L(var+"ic")}\n{L(var+"iw")}:\nbuffer_load_dword v30, off, {DBG}, 0 offset:{DBG_INIT} sc1\ns_add_u32 s{sT}, s{sT}, 1\ns_cmp_gt_u32 s{sT}, 50000\ns_cbranch_scc1 L_end\ns_waitcnt vmcnt(0)\n{L(var+"ic")}:\nv_readfirstlane_b32 s44, v30\ns_and_b32 s44, s44, 0xffff\ns_cmp_ge_u32 s44, {NINIT}\ns_cbranch_scc1 {L(var+"ni")}\ns_sleep 32\ns_branch {L(var+"iw")}')
            A(f'{L(var+"ni")}:\ns_sub_u32 s{sT}, s{sIT}, 3\nv_mov_b32 v30, s{sT}\ns_mov_b64 exec, 1\nbuffer_store_dword v30, off, {WS}, s{sFL} sc1\ns_mov_b64 exec, -1\n{L(var+"nf")}:')
        side=[]
        for ii in range(10): side+=dma(ii)
        side+=adv()
        for kk in range(20):
            for n,(tt,T) in enumerate(((0,0),(0,1),(1,0),(1,1))):
                if T==0: A(f's_waitcnt lgkmcnt({lg.wait(f"{kk}_{tt}")})')
                x=f'v[{XB+8*(kk%4)+4*tt}:{XB+8*(kk%4)+4*tt+3}]'; w=f'a[{(kk*2+T)*4}:{(kk*2+T)*4+3}]'
                d=ACC+8*tt+4*T; c='0' if kk==0 else f'v[{d}:{d+3}]'
                A(f'v_mfma_f32_16x16x32_bf16 v[{d}:{d+3}], '+(f'{w}, {x}' if var=='k' else f'{x}, {w}')+f', {c}')
                if kk+3<20 and n in (0,2): rd(kk+3,n>>1)
                if n in (1,3) and side: A(side.pop(0))
        assert not side
        A(f's_add_u32 s{sIT}, s{sIT}, 1\ns_and_b32 s{sT}, s{sIT}, 3\ns_cmp_eq_u32 s{sT}, 0\ns_mov_b32 s{sT2}, 40960\ns_cselect_b32 s{sT}, {-3*40960}, s{sT2}')
        for k in range(4): A(f'v_add_u32 v{20+k}, s{sT}, v{20+k}')
        for o in range(2):
            for h in range(2):
                d=ACC+8*o+4*h if var=='k' else ACC+8*h+4*o
                cvt(A,OUTR+4*o+2*h,d,d+1); cvt(A,OUTR+4*o+2*h+1,d+2,d+3)
            A(f'buffer_store_dwordx4 v[{OUTR+4*o}:{OUTR+4*o+3}], v0, {WS}, s{sOUT} offen offset:{1024*o} {stf}')
        if nost: A(f's_mov_b32 s{sOSTR}, 0')
        A(f's_add_u32 s{sOUT}, s{sOUT}, s{sOSTR}\ns_cmp_lt_u32 s{sIT}, 3\ns_cbranch_scc1 {L(var+"e")}')
        A(f's_cmp_lt_u32 s{sIT}, 32\ns_waitcnt vmcnt(26)\ns_cbranch_scc1 {L(var)}\ns_branch {L("end")}')
        A(f'{L(var+"e")}:\ns_waitcnt vmcnt(22)\ns_branch {L(var)}')
    A(f'{L("end")}:\ns_waitcnt vmcnt(0)\ns_barrier')
    if flags:
        A(f's_cmp_lg_u32 s{sWAVE}, 0\ns_cbranch_scc1 {L("nf")}\nv_mov_b32 v30, 32\ns_mov_b64 exec, 1\nbuffer_store_dword v30, off, {WS}, s{sFL} sc1\ns_mov_b64 exec, -1\n{L("nf")}:')

def prefetch_code(A,which):
    A('s_load_dwordx2 s[36:37], s[0:1], 0\ns_load_dwordx2 s[38:39], s[0:1], 56')
    A(f's_sub_u32 s26, s21, 128\ns_lshl_b32 s26, s26, 2\ns_add_u32 s26, s26, s{sWAVE}\ns_lshl_b32 s26, s26, 13\nv_lshl_add_u32 v5, v255, 7, s26\nv_add_u32 v6, 0x200000, v5\nv_add_u32 v7, 0x400000, v5\ns_waitcnt lgkmcnt(0)')
    for w in which:
        b,n={'x':(36,2621440),'u':(38,2621440),'o':(66,5242880)}[w]
        A.srd(S_T0,b,n)
        for k in range(2 if n<4000000 else 3): A(f'buffer_load_dword v253, v{5+k}, {T0}, 0 offen')
```

```python
import sys
from common import *
import qkv, att, s4, ma, importlib
NAME='concat_heads__memory_aug_recurrent_mem_tr__ssm_conv_s4__prompt'
def gen(diag=False, force_fill=0, stop=0, probe=9, qkw={}, s4first=0, wdelay=0, codepre=1, pf=('x','ou'), rot=0, hold=None, xperm=(0,4,1,5,2,3,6,7), mod='chain', **kw):
    chain=importlib.import_module(mod)
    A=Asm()
    sTEAM,sRANK=chain.sTEAM,chain.sRANK
    if diag or hold is not None: A('s_memrealtime s[100:101]')
    A('s_cmp_ge_u32 s2, 256\ns_cbranch_scc1 L_end')
    A('s_load_dwordx4 s[4:7], s[0:1], 136')
    A('s_getreg_b32 s23, hwreg(HW_REG_XCC_ID)\ns_and_b32 s23, s23, 15')
    if xperm:
        tab=sum(v<<(4*i) for i,v in enumerate(xperm))
        A(f's_lshl_b32 s24, s23, 2\ns_lshr_b32 s24, {hex(tab)}, s24\ns_and_b32 s24, s24, 7\ns_cmp_lt_u32 s23, 8\ns_cselect_b32 s23, s24, s23')
    if force_fill: A(f's_add_u32 s23, s23, s2\ns_lshr_b32 s24, s2, 3\ns_add_u32 s23, s23, s24\ns_and_b32 s23, s23, 15')
    A('v_lshrrev_b32 v1, 6, v0\nv_and_b32 v255, 63, v0')
    A('s_and_b32 s24, s23, 1\ns_lshl_b32 s24, s24, 6\ns_lshr_b32 s25, s23, 1\ns_lshl_b32 s25, s25, 2\ns_add_u32 s25, s25, 128\ns_cmp_lt_u32 s23, 2\ns_cselect_b32 s25, 0, s25\ns_add_u32 s24, s24, s25')
    A('v_readfirstlane_b32 s22, v1\nv_mov_b32 v2, 0\ns_waitcnt lgkmcnt(0)')
    A.srd(S_WS,6,WS_SIZE); A.srd(S_DBG,4,256)
    A.c('register on the counter of the die this workgroup runs on; pull a slice of the code into L2 meanwhile')
    A(f's_cmp_lg_u32 s22, 0\ns_cbranch_scc1 L_noat\ns_mov_b64 exec, 1\nv_mov_b32 v3, 1\nbuffer_atomic_add v3, off, {DBG}, s24 sc0 sc1\ns_mov_b64 exec, -1')
    if codepre:
        A('s_getpc_b64 s[26:27]\ns_bfe_u32 s28, s2, 0x30003\ns_lshl_b32 s28, s28, 13\nv_lshl_add_u32 v4, v255, 7, s28\nv_min_u32 v4, L_end-.-16, v4\nglobal_load_dword v254, v4, s[26:27]')
    A(f'L_noat:\ns_mov_b32 s{chain.sPOL}, 1\ns_cmp_lt_u32 s23, 6\ns_cbranch_scc1 L_pre2\ns_cmp_lg_u32 s22, 1\ns_cbranch_scc1 L_pre2')
    A.c('which of two adjacent 8 KiB blocks is further from this die, i.e. nearer to dies 0/1? (places the cross-die hand-off area; speed only)')
    A(f's_and_b32 s26, s2, 127\ns_lshl_b32 s26, s26, 14\ns_add_u32 s26, s26, {WS_AGR+6144}\ns_add_u32 s26, s6, s26\ns_addc_u32 s27, s7, 0')
    A('s_load_dword s28, s[26:27], 0 glc\ns_load_dword s29, s[26:27], 8192 glc\ns_mov_b32 s34, 0\ns_mov_b32 s31, 0\ns_mov_b32 s33, -1\ns_mov_b32 s35, -1\ns_waitcnt lgkmcnt(0)\ns_xor_b32 s29, s29, s28')
    A.c('alternating rounds through the same code, the first only warms it; keep the shortest spin of each block')
    A('L_pro:\ns_cmp_eq_u32 s34, 0\ns_cselect_b32 s32, 400, 0\ns_not_b32 s30, s28\ns_load_dword s30, s[26:27], s31 glc')
    A('L_pr:\ns_add_u32 s32, s32, 1\ns_cmp_eq_u32 s30, s28\ns_cbranch_scc1 L_pre\ns_cmp_lt_u32 s32, 500\ns_cbranch_scc1 L_pr')
    A(f'L_pre:\ns_waitcnt lgkmcnt(0)\ns_min_u32 s32, s32, s33\ns_mov_b32 s33, s35\ns_mov_b32 s35, s32\ns_xor_b32 s28, s28, s29\ns_xor_b32 s31, s31, 8192\ns_add_u32 s34, s34, 1\ns_cmp_lt_u32 s34, {probe}\ns_cbranch_scc1 L_pro')
    A(f's_cmp_gt_u32 s35, s33\ns_cselect_b32 s{chain.sPOL}, 1, 0x10001')
    A('L_pre2:')
    chain.chain_pre(A)
    A(f'L_nopr:\ns_cmp_lg_u32 s22, 0\ns_cbranch_scc1 L_reg\ns_waitcnt vmcnt({1 if codepre else 0})\ns_mov_b64 exec, 1\nds_write_b32 v2, v3\ns_mov_b64 exec, -1\ns_waitcnt lgkmcnt(0)')
    A(f'L_reg:\ns_barrier\nds_read_b32 v3, v2\ns_waitcnt lgkmcnt(0)\nv_readfirstlane_b32 s{sRANK}, v3\ns_mov_b32 s{sTEAM}, s23')
    A(f's_cmp_ge_u32 s23, 8\ns_cbranch_scc1 L_other\ns_cmp_lt_u32 s{sRANK}, 32\ns_cbranch_scc1 L_seat')
    A('L_other:')
    A.c('no seat on this die: wait until all 256 workgroups have registered, then take one of the seats left open')
    A('v_and_b32 v4, 1, v255\nv_lshlrev_b32 v4, 6, v4\nv_lshrrev_b32 v5, 1, v255\nv_lshlrev_b32 v5, 2, v5\nv_add_u32 v5, 128, v5\nv_cmp_gt_u32 vcc, 2, v255\ns_mov_b32 s26, 0\ns_nop 0\nv_cndmask_b32 v5, v5, v2, vcc\nv_add_u32 v4, v4, v5')
    A(f'L_cnt:\ns_mov_b64 exec, 0xffff\nbuffer_load_dword v5, v4, {DBG}, 0 offen sc1\ns_add_u32 s26, s26, 1\ns_cmp_gt_u32 s26, 200000\ns_cbranch_scc1 L_end\ns_waitcnt vmcnt(0)\ns_mov_b64 exec, -1')
    A('s_mov_b32 s27, 0\ns_mov_b32 s28, 0')
    for x in range(16):
        A(f'v_readlane_b32 s29, v5, {x}\ns_add_u32 s27, s27, s29')
        if x<8: A(f's_min_u32 s{30+x}, s29, 32\ns_sub_u32 s29, s29, s{30+x}')
        A(f's_cmp_gt_u32 s23, {x}\ns_cselect_b32 s29, s29, 0\ns_add_u32 s28, s28, s29')
    A('s_cmp_ge_u32 s27, 256\ns_cbranch_scc1 L_cntok\ns_sleep 4\ns_branch L_cnt\nL_cntok:')
    A(f's_cmp_lt_u32 s23, 8\ns_cselect_b32 s29, 32, 0\ns_sub_u32 s29, s{sRANK}, s29\ns_add_u32 s28, s28, s29')
    for t in range(8):
        A(f's_add_u32 s{sRANK}, s{30+t}, s28\ns_mov_b32 s{sTEAM}, {t}\ns_cmp_lt_u32 s{sRANK}, 32\ns_cbranch_scc1 L_seat\ns_sub_u32 s28, s{sRANK}, 32')
    A('s_branch L_end\nL_seat:')
    A(f's_cmp_lt_u32 s{sTEAM}, 2\ns_cbranch_scc1 L_chain\ns_sub_u32 s20, s20, 2\ns_lshl_b32 s20, s20, 5\ns_add_u32 s21, s21, s20')
    A('s_and_b32 s20, s21, 1\ns_mul_i32 s20, s20, 96\ns_lshr_b32 s23, s21, 1\ns_add_u32 s20, s20, s23\ns_barrier')
    def dg(k):
        if diag: A(f's_memrealtime s[{90+2*k}:{91+2*k}]')
    A('s_cmp_lt_u32 s21, 128\ns_cbranch_scc1 L_noarm\ns_bfe_u32 s24, s21, 0x10005\ns_and_b32 s25, s21, 31\nv_lshlrev_b32 v4, 4, v255')
    qkv.prefetch_code(A,pf[0])
    chain.arm_code(A,24,25,(26,27,28),4,8)
    A(f's_waitcnt vmcnt(0)\ns_barrier\ns_cmp_lg_u32 s22, 1\ns_cbranch_scc1 L_noar2\ns_mov_b64 exec, 1\nv_mov_b32 v8, s{chain.sPOL}\nbuffer_atomic_add v8, off, {DBG}, 0 offset:{DBG_INIT} sc1\ns_mov_b64 exec, -1\nL_noar2:')
    if pf[1]: qkv.prefetch_code(A,pf[1])
    A('L_noarm:')
    for _ in range(wdelay): A('s_sleep 40')
    dg(0)
    if s4first:
        A('s_cmp_lt_u32 s21, 128\ns_cbranch_scc1 L_qkv\ns_sub_u32 s20, s21, 32\ns_mov_b32 s23, 0\ns_branch L_s4\nL_qkv:')
        A('s_and_b32 s20, s21, 1\ns_mul_i32 s20, s20, 96\ns_lshr_b32 s23, s21, 1\ns_add_u32 s20, s20, s23')
    qkv.qkv_code(A,flags=True,diag=diag,**qkw)
    dg(1)
    if diag: A('s_memtime s[88:89]\ns_waitcnt lgkmcnt(0)\ns_sub_u32 s98, s88, s86')
    if stop==1: A('s_branch L_fin')
    A('s_cmp_lt_u32 s21, 64\ns_cbranch_scc1 L_ma')
    A('s_and_b32 s23, s21, 31\ns_lshr_b32 s24, s21, 5\ns_sub_u32 s24, s24, 2\ns_cmp_lt_u32 s23, 20\ns_cbranch_scc1 L_out')
    per=24 if s4first else 40
    A(f's_mul_i32 s24, s24, {per}\ns_add_u32 s20, s24, s23\ns_sub_u32 s20, s20, 20\ns_add_u32 s23, s24, {per}\nL_s4:')
    s4.s4_code(A,idreg=20)
    A('s_add_u32 s20, s20, 12\ns_cmp_lt_u32 s20, s23\ns_cbranch_scc1 L_s4')
    if s4first: A('s_cmp_eq_u32 s23, 0\ns_cbranch_scc1 L_qkv')
    A('s_branch L_fin\nL_ma:')
    ma.ma_code(A,fail='L_fin',polfix=kw.get('polfix'))
    A('s_branch L_fin\nL_out:\ns_mul_i32 s24, s24, 20\ns_add_u32 s20, s24, s23')
    att.out_code(A,flags=True,fail='L_fin',nset=4)
    A('s_branch L_fin\nL_chain:')
    if rot: A(f's_add_u32 s21, s21, {rot}\ns_and_b32 s21, s21, 31')
    dg(0)
    chain.chain_code(A,fused=True,diag=diag,**kw)
    if diag: A(f's_lshl_b32 s23, s{sTEAM}, 5\ns_add_u32 s21, s{sRANK}, s23\ns_add_u32 s21, s21, 192')
    A('L_fin:')
    if hold is not None:
        if hold>=0: A(f's_getreg_b32 s3, hwreg(HW_REG_XCC_ID)\ns_and_b32 s3, s3, 15\ns_cmp_lg_u32 s3, {hold}\ns_cbranch_scc1 L_end')
        A('L_hold:\ns_sleep 1\ns_memrealtime s[96:97]\ns_waitcnt lgkmcnt(0)\ns_sub_u32 s96, s96, s100\ns_cmp_lt_u32 s96, 20000\ns_cbranch_scc1 L_hold')
    if diag:
        dg(3)
        A('s_mov_b64 exec, -1\ns_waitcnt vmcnt(0) lgkmcnt(0)')
        A('v_mov_b32 v16, s100\nv_mov_b32 v17, s90\nv_mov_b32 v18, s92\nv_mov_b32 v19, s94\nv_mov_b32 v20, s96\nv_mov_b32 v21, s34\nv_mov_b32 v22, s80\nv_mov_b32 v23, s98')
        A(f's_lshl_b32 s3, s21, 2\ns_add_u32 s3, s3, s22\ns_lshl_b32 s3, s3, 5\ns_add_u32 s3, s3, {WS_DIAG}\ns_mov_b64 exec, 1')
        A(f'buffer_store_dwordx4 v[16:19], off, {WS}, s3\nbuffer_store_dwordx4 v[20:23], off, {WS}, s3 offset:16')
        if diag==2:
            A('s_load_dwordx2 s[4:5], s[0:1], 136\ns_waitcnt lgkmcnt(0)'); A.srd(S_DBG,4,256)
            A(f'v_not_b32 v16, v16\nbuffer_atomic_umax v16, off, {DBG}, 0 offset:12\nbuffer_atomic_umax v20, off, {DBG}, 0 offset:24\nv_mov_b32 v24, s8\nbuffer_store_dword v24, off, {DBG}, 0 offset:4')
            A(f's_cmp_lt_u32 s21, 192\ns_cbranch_scc1 L_dw\nbuffer_store_dword v23, off, {DBG}, 0 offset:8\nbuffer_atomic_umax v19, off, {DBG}, 0 offset:16\nbuffer_atomic_umax v20, off, {DBG}, 0 offset:20\nbuffer_atomic_umax v17, off, {DBG}, 0 offset:36\nbuffer_atomic_umax v21, off, {DBG}, 0 offset:40\ns_branch L_end')
            A(f'L_dw:\nbuffer_atomic_umax v18, off, {DBG}, 0 offset:28\nbuffer_atomic_umax v17, off, {DBG}, 0 offset:32')
        if kw.get('trace'):
            A(f's_cmp_lt_u32 s21, 192\ns_cbranch_scc1 L_end\ns_mov_b64 exec, -1\ns_barrier\nds_read_b128 v[16:19], v0 offset:7168\ns_lshl_b32 s3, s21, 10\ns_add_u32 s3, s3, {WS_DIAG+0x100000}\ns_waitcnt lgkmcnt(0)\nbuffer_store_dwordx4 v[16:19], v0, {WS}, s3 offen')
    A('L_end:\ns_endpgm')
    hdr=''.join(l for l in open(f'cdna_kernels/{NAME}.s.ref') if l.startswith(';') and '@launch' not in l)
    return hdr+wrap(NAME+'_kernel',A.text(),256,256,163840,vgpr=512,accum=256)
if __name__=='__main__':
    kw=eval(sys.argv[2]) if len(sys.argv)>2 else {}
    open(sys.argv[1],'w').write(gen(**kw))
```
